```python
import torch

def _softmax(x, axis=-1):
    return torch.softmax(x, dim=axis)

def _gelu(x):
    return torch.nn.functional.gelu(x, approximate='tanh')

def _silu(x):
    return torch.nn.functional.silu(x)

def _sigmoid(x):
    return torch.sigmoid(x)

def _layernorm(x, axis=-1, eps=1e-05):
    m = x.mean(dim=axis, keepdim=True)
    v = x.var(dim=axis, keepdim=True, unbiased=False)
    return (x - m) / torch.sqrt(v + eps)

def _scatter_add(tgt, idx, src, axis=0):
    return tgt.clone().index_add_(axis, idx, src)

def _segment_sum(src, seg, n):
    out = torch.zeros((n,) + src.shape[1:], dtype=src.dtype)
    return out.index_add_(0, seg, src)

def _pad(x, pw):
    flat = tuple((v for pair in reversed(pw) for v in pair))
    return torch.nn.functional.pad(x, flat)
kernel_name = 'recurrent_scan__sliding_local_dilated__mixer_gmlp__prompt'

def setup_inputs():

    _w = lambda a: (lambda t: t.to(torch.bfloat16) if t.is_floating_point() else t)(torch.as_tensor(a))

    def _A_setup():
        B, S, D = (1, 2048, 512)
        return {'x': _w((lambda *s: torch.randn(*s, dtype=torch.bfloat16) * 0.05)(B, S, D)), 'wqkv': _w((lambda *s: torch.randn(*s, dtype=torch.bfloat16) * 0.05)(D, 3 * D)), 'wo': _w((lambda *s: torch.randn(*s, dtype=torch.bfloat16) * 0.05)(D, D))}
    _A_in = _A_setup()

    def _B_setup():
        B, S, D, F = (1, 2048, 512, 1792)
        Fh = F // 2
        return {'x': _w((lambda *s: torch.randn(*s, dtype=torch.bfloat16) * 0.05)(B, S, D)), 'w_in': _w((lambda *s: torch.randn(*s, dtype=torch.bfloat16) * 0.4)(D, 2 * Fh)), 'w_sp': _w(0.01 * (lambda *s: torch.randn(*s, dtype=torch.bfloat16) * 0.4)(S, S)), 'b_sp': _w(1.0 + 0.01 * (lambda *s: torch.randn(*s, dtype=torch.bfloat16) * 0.05)(S)), 'w_out': _w((lambda *s: torch.randn(*s, dtype=torch.bfloat16) * 0.05)(Fh, D))}
    _B_in = _B_setup()
    return {'A_x': _A_in['x'], 'A_wqkv': _A_in['wqkv'], 'A_wo': _A_in['wo'], 'B_x': _B_in['x'], 'B_w_in': _B_in['w_in'], 'B_w_sp': _B_in['w_sp'], 'B_b_sp': _B_in['b_sp'], 'B_w_out': _B_in['w_out']}

def reference(A_x, A_wqkv, A_wo, B_x, B_w_in, B_w_sp, B_b_sp, B_w_out):

    def _A_ref(x, wqkv, wo):
        B, S, D = x.shape
        H = 32
        Dh = D // H
        W, dil = (8, 2)
        qkv = (lambda x, *d: x.permute(*d))((x @ wqkv).reshape(B, S, 3, H, Dh), 2, 0, 3, 1, 4)
        q, k, v = (qkv[0], qkv[1], qkv[2])
        scale = Dh ** (-0.5)
        pos = torch.arange(S)
        off = torch.arange(W) * dil
        idx = pos[:, None] - off[None, :]
        mask = idx >= 0
        idx_c = torch.where(mask, idx, 0).reshape(-1)
        kg = k[:, :, idx_c, :].reshape(B, H, S, W, Dh)
        vg = v[:, :, idx_c, :].reshape(B, H, S, W, Dh)
        logits = torch.einsum('bhsd,bhswd->bhsw', q, kg) * scale
        logits = torch.where(mask[None, None, :, :], logits, -1000000000.0)
        attn = _softmax(logits, axis=-1)
        o = torch.einsum('bhsw,bhswd->bhsd', attn, vg)
        return (lambda x, *d: x.permute(*d))(o, 0, 2, 1, 3).reshape(B, S, D) @ wo

    def _B_ref(x, w_in, w_sp, b_sp, w_out):
        B, S, D = x.shape
        F = w_in.shape[-1]
        Fh = F // 2
        z = _gelu(torch.einsum('bsd,df->bsf', x, w_in))
        z1 = z[..., :Fh].clone()
        z2 = _layernorm(z[..., Fh:], axis=-1)
        g = torch.einsum('ts,bsf->btf', w_sp, z2) + b_sp[None, :, None]
        return torch.einsum('bsf,fd->bsd', z1 * g, w_out)
    x = A_x
    xn = _layernorm(x, axis=-1)
    s = _A_ref(xn, A_wqkv, A_wo)
    g = _silu(_B_ref(xn, B_w_in, B_w_sp, B_b_sp, B_w_out))
    return x + s * g
```

```python
import re

REG_RE = re.compile(r'(?<![\w.])([vas])(?:(\d+)|\[(\d+):(\d+)\])(?![\w])')
TRANS = ('v_exp_f32', 'v_log_f32', 'v_rcp_f32', 'v_rsq_f32', 'v_sqrt_f32', 'v_sin_f32', 'v_cos_f32')

def regs_of(op):
    out = []
    for m in REG_RE.finditer(op):
        k = m.group(1)
        if m.group(2) is not None:
            out.append((k, int(m.group(2))))
        else:
            out += [(k, i) for i in range(int(m.group(3)), int(m.group(4)) + 1)]
    if re.search(r'\bvcc\b', op): out += [('s', 106), ('s', 107)]
    if re.search(r'\bvcc_lo\b', op): out += [('s', 106)]
    if re.search(r'\bvcc_hi\b', op): out += [('s', 107)]
    if re.search(r'\bm0\b', op): out += [('s', 124)]
    if re.search(r'\bexec\b', op): out += [('s', 126), ('s', 127)]
    return out

class Inst:
    __slots__ = ('text', 'mn', 'cls', 'defs', 'uses', 'tok', 'ops', 'cost', 'srcc', 'ab', 'data')
    def __init__(self, text, tok=None):
        self.text = text
        self.tok = tok
        t = text.split(';')[0].strip()
        self.defs, self.uses, self.srcc, self.ab, self.data = set(), set(), (), set(), set()
        self.cost = 1
        if t.endswith(':'):
            self.mn, self.cls, self.ops, self.cost = t, 'label', [], 0
            return
        parts = t.split(None, 1)
        mn = self.mn = parts[0]
        ops = self.ops = [o.strip() for o in parts[1].split(',')] if len(parts) > 1 else []
        R = [regs_of(o) for o in ops]
        allr = [r for x in R for r in x]
        def d(i): self.defs.update(R[i])
        def u(i0=0):
            for x in R[i0:]: self.uses.update(x)
        if mn.startswith('v_mfma'):
            self.cls = 'mfma'; d(0); u(1); self.srcc = tuple(R[3]); self.ab = set(R[1]) | set(R[2]); self.cost = 2
        elif mn.startswith('v_'):
            self.cls = 'valu'
            if mn.startswith(TRANS): self.cls = 'trans'; self.cost = 2
            d(0); u(1)
            if mn.startswith(('v_swap', 'v_permlane16_swap', 'v_permlane32_swap')):
                d(1); u(0); self.cost = 2
            if mn.startswith(('v_fmac', 'v_dot2c', 'v_pk_fmac', 'v_writelane')): u(0)
            if '_co_' in mn: d(1)
            if mn.endswith('_dpp') or 'row_' in t or 'quad_perm' in t: u(0)
        elif mn.startswith('ds_read') or mn.startswith('ds_bpermute') or mn.startswith('ds_swizzle'):
            self.cls = 'dsr'; d(0); u(1)
        elif mn.startswith('ds_write'):
            self.cls = 'dsw'; u(0)
        elif mn.startswith(('buffer_load', 'global_load')):
            if re.search(r'\blds\b', t) or '_lds_' in mn:
                self.cls = 'dma'; u(0); self.uses.add(('s', 124))
            else:
                self.cls = 'vld'; d(0); u(1)
        elif mn.startswith('buffer_store'):
            self.cls = 'vst'; u(0); self.data = set(R[0])
        elif mn.startswith('global_store'):
            self.cls = 'vst'; u(0); self.data = set(R[1])
        elif mn.startswith(('s_load', 's_memtime', 's_memrealtime')):
            self.cls = 'smem'; d(0); u(1)
        elif mn in ('s_waitcnt', 's_nop', 's_barrier', 's_endpgm', 's_sleep', 's_setprio') or mn.startswith(('s_cbranch', 's_branch')):
            self.cls = mn if mn in ('s_waitcnt', 's_nop', 's_barrier') else 'ctl'
            if 'vcc' in mn: self.uses.update([('s', 106), ('s', 107)])
        elif mn.startswith(('s_cmp', 's_bitcmp')):
            self.cls = 'salu'; u(0)
        elif mn.startswith('s_'):
            self.cls = 'salu'; d(0); u(1)
            if mn.startswith(('s_addk', 's_mulk', 's_cmov')): u(0)
            if 'saveexec' in mn: self.defs.update([('s', 126), ('s', 127)])
        elif mn.startswith('.') or mn.startswith('@'):
            self.cls = 'pseudo'; self.cost = 0
        else:
            raise ValueError('unknown instruction: ' + text)

class Tok:
    pass

def I(text, tok=None):
    return Inst(text, tok)

def WaitVM(tok):
    i = Inst('@waitvm'); i.tok = tok; return i
def WaitLGKM0():
    return Inst('@waitlgkm0')
def WaitVM0():
    return Inst('@waitvm0')
def Drained():
    return Inst('@drained')

def finalize(insts, stats=None):
    out = []
    vmq, lgq = [], []
    pos = 0
    lastw = {}
    lastc = {}
    lastst = {}
    nops = 0; waits = 0
    def emit(text, n=1):
        nonlocal pos
        out.append(text); pos += n
    def do_wait(vm=None, lg=None):
        nonlocal vmq, lgq, waits
        s = []
        if vm is not None:
            vm = min(vm, 63)
            if vm < len(vmq):
                s.append(f'vmcnt({vm})'); vmq = vmq[len(vmq) - vm:] if vm else []
        if lg is not None:
            if any(x.cls == 'smem' for x in lgq): lg = 0
            lg = min(lg, 15)
            if lg < len(lgq):
                s.append(f'lgkmcnt({lg})'); lgq = lgq[len(lgq) - lg:] if lg else []
        if s:
            emit('s_waitcnt ' + ' '.join(s)); waits += 1
    pend_vm = pend_lg = None
    for ins in insts:
        if ins.cls == 'pseudo' and ins.mn.startswith('@'):
            if ins.mn == '@waitvm':
                idx = [k for k, x in enumerate(vmq) if x.tok is ins.tok]
                assert getattr(ins.tok, 'issued', False), 'waiting for a token never issued'
                if idx:
                    n = len(vmq) - 1 - idx[-1]
                    pend_vm = n if pend_vm is None else min(pend_vm, n)
            elif ins.mn == '@waitvm0': pend_vm = 0
            elif ins.mn == '@waitlgkm0': pend_lg = 0
            elif ins.mn == '@drained':
                vmq, lgq = [], []
            continue
        if ins.cls in ('label', 'pseudo'):
            do_wait(pend_vm, pend_lg); pend_vm = pend_lg = None
            out.append(ins.text); continue
        touched = ins.defs | ins.uses
        for k in range(len(vmq) - 1, -1, -1):
            if vmq[k].defs & touched:
                n = len(vmq) - 1 - k
                pend_vm = n if pend_vm is None else min(pend_vm, n); break
        for k in range(len(lgq) - 1, -1, -1):
            if lgq[k].defs & touched:
                n = len(lgq) - 1 - k
                pend_lg = n if pend_lg is None else min(pend_lg, n); break
        do_wait(pend_vm, pend_lg); pend_vm = pend_lg = None
        need = 0
        def req(p, ws):
            nonlocal need
            need = max(need, ws - (pos - p - 1))
        isvalu = ins.cls in ('valu', 'trans')
        ismem = ins.cls in ('dsr', 'dsw', 'vld', 'vst', 'dma')
        isvmem = ins.cls in ('vld', 'vst', 'dma')
        isdpp = isvalu and ('_dpp' in ins.mn or 'quad_perm' in ins.text or 'row_' in ins.text)
        isperm = ins.mn.startswith('v_permlane')
        isrl = ins.mn.startswith(('v_readlane', 'v_readfirstlane'))
        for r in ins.uses:
            if r not in lastw: continue
            kind, p, w = lastw[r]
            if r[0] in 'va':
                if kind in ('valu', 'trans'):
                    if ins.cls == 'mfma': req(p, 2)
                    if isdpp or isperm: req(p, 2)
                    if isrl: req(p, 1)
                    if kind == 'trans' and ins.cls != 'trans': req(p, 1)
                    if w.mn.startswith('v_dot'):
                        if ins.mn == w.mn and (r in regs_of(ins.ops[-1] if not ins.mn.startswith('v_dot2c') else ins.ops[0])) and not (
                                r in regs_of(ins.ops[1]) or r in regs_of(ins.ops[2])):
                            pass
                        else: req(p, 3)
                elif kind == 'mfma':
                    if ins.cls == 'mfma':
                        if r in ins.ab: req(p, 8)
                        elif tuple(sorted(w.defs)) == tuple(sorted(ins.srcc)) and w.mn == ins.mn: pass
                        else: req(p, 6)
                    else: req(p, 8)
            else:
                if kind in ('valu', 'trans'):
                    if isvalu: req(p, 4 if ins.mn.startswith(('v_readlane', 'v_writelane')) else 2)
                    if isvmem: req(p, 5)
                    if ins.cls in ('salu', 'ctl'): req(p, 1)
                elif kind == 'salu' and r == ('s', 124) and ins.cls == 'dma': req(p, 1)
        for r in ins.defs:
            if r[0] in 'va':
                if r in lastw:
                    kind, p, w = lastw[r]
                    if kind == 'mfma' and ins.cls != 'mfma': req(p, 8)
                    if kind == 'mfma' and ins.cls == 'mfma' and r not in ins.srcc: req(p, 6)
                    if kind == 'valu' and w.mn.startswith('v_dot') and ins.mn != w.mn: req(p, 3)
                if r in lastc and ins.cls != 'mfma': req(lastc[r], 3)
                if r in lastst: req(lastst[r], 2)
        if need > 0:
            emit(f's_nop {need - 1}', need); nops += need
        n = 1
        if ins.cls == 's_nop': n = int(ins.ops[0]) + 1
        if ins.cls == 's_waitcnt':
            m = re.search(r'vmcnt\((\d+)\)', ins.text)
            if m: vmq = vmq[len(vmq) - int(m.group(1)):] if 0 < int(m.group(1)) < len(vmq) else ([] if int(m.group(1)) == 0 else vmq)
            m = re.search(r'lgkmcnt\((\d+)\)', ins.text)
            if m and int(m.group(1)) == 0: lgq = []
        p = pos
        emit(ins.text, n)
        for r in ins.defs: lastw[r] = (ins.cls, p, ins)
        if ins.cls == 'mfma':
            for r in ins.srcc: lastc[r] = p
        if ins.cls == 'vst' and len(ins.data) >= 3:
            for r in ins.data: lastst[r] = p
        if ins.cls in ('vld', 'vst', 'dma'):
            vmq.append(ins)
            if len(vmq) > 63: vmq = vmq[-63:] if False else vmq
        if ins.cls in ('dsr', 'dsw', 'smem'): lgq.append(ins)
        if ins.tok is not None: ins.tok.issued = True
    if stats is not None:
        stats['nops'] = nops; stats['waits'] = waits; stats['n'] = len(out)
    return out

class BG:
    def __init__(self): self.q = []; self.delay = 0
    def add(self, items): self.q += items
    def barrier_passed(self):
        if self.q and self.q[0] == ('bar',): self.q.pop(0)
    def tick(self):
        if self.delay > 0: self.delay -= 1
    def peek(self):
        while self.q and isinstance(self.q[0], tuple) and self.q[0][0] == 'delay':
            self.delay = self.q.pop(0)[1]
        if self.delay > 0 or not self.q or isinstance(self.q[0], tuple): return None
        return self.q[0]
    def pop(self): return self.q.pop(0)
    def empty(self): return not self.q

def weave(mfmas, high, bgs=(), slots=2, spread=False):
    out = []
    high = list(high)
    n = len(mfmas)
    for k, m in enumerate(mfmas):
        out.append(m)
        left = slots
        rem = n - k
        hcost = sum(h.cost for h in high)
        quota = max(slots, -(-hcost // rem))
        if spread: quota = -(-hcost // rem)
        used = 0
        while high and (used < quota or high[0].cost == 0):
            h = high.pop(0); out.append(h); used += h.cost
        left -= used
        for bg in bgs:
            bg.tick()
            while True:
                x = bg.peek()
                if x is None or x.cost > left: break
                out.append(bg.pop()); left -= x.cost
    out += high
    return out
```

```python
import sys, math, struct
from asmfw import *

NAME = "recurrent_scan__sliding_local_dilated__mixer_gmlp__prompt"
PAGE = 8192
WS_FLAGZ, WS_FLAGO, WS_FLAGH = 0x1000, 0x2000, 0x3000
WS_STATS = 0x10000
WS_Z2N, WS_O, WS_H, WS_S = 0x100000, 0x500000, 0x700000, 0xB00000
WS_PROF = 0x1000000
TAGC = 0x9E3779B9
SPIN = 30000
PG_TR = 18
SCR = 19 * PAGE
RS, STA, STB = SCR, SCR + 512, SCR + 512 + 2048
NRING = 18

def f2u(x): return struct.unpack('<I', struct.pack('<f', x))[0]
LOG2E = math.log2(math.e)
GC0 = -2.0 * math.sqrt(2.0 / math.pi) * LOG2E
GC1 = GC0 * 0.044715

SX, SQKV, SWIN, SWSP, SWOUT, SWS, SOUT, SBSP, SWO = [f's[{i}:{i+3}]' for i in range(4, 40, 4)]
sW, sRB, sCB, sROT, sROT2, sTAG, sM0B = 's40', 's41', 's42', 's43', 's44', 's45', 's46'
sKIN = [f's{48+i}' for i in range(8)]
sKQ = [f's{56+i}' for i in range(8)]
sONES, sLO, sHI = 's64', 's65', 's66'
sOFF = 's67'
sT = [f's{68+i}' for i in range(8)]
sZP = 's76'
sZB = 's77'
sSPP = 's78'
sCNT = 's79'
mP, mA, mB = 's[80:81]', 's[82:83]', 's[84:85]'
sO1, sO2, sO3, sO4 = 's86', 's87', 's88', 's89'
sPT = 's[90:91]'
sPB = 's92'
sBIAS = 's93'

vL, vL16 = 'v0', 'v1'
vDWIN, vDQKV, vDSP, vDOUT = (2, 3), (4, 5), (6, 7), (8, 9)
vXR = (10, 11)
vTRZ = 12
vTRC = 18
vR = 21
vB = 26
vXH = (30, 31)
ACCA = 32
QA, KA, VA = 64, 80, 100
FB = 120
HALO = 168
ACCB = 168
TMP = 232

def vr(b, n=4): return f'v[{b}:{b+n-1}]'
def ar(b, n=4): return f'a[{b}:{b+n-1}]'
def MF(d, a, b, c=None, k=32):
    return I(f'v_mfma_f32_16x16x{k}_bf16 {vr(d)}, {a}, {b}, {vr(d) if c is None else c}')

class Gen:
    def __init__(self, prof=False):
        self.prof = prof
        self.slow = []
        self.nlab = 0
        self.nprof = 0

    def label(self, s):
        self.nlab += 1
        return f'L_{s}_{self.nlab}'

    def stamp(self, idx):
        if not self.prof: return []
        return [I(f's_memrealtime {sPT}'), WaitLGKM0(), I(f'v_mov_b32 v255, s90'), I(f'v_mov_b32 v254, 0'),
                I(f'buffer_store_dword v255, v254, {SWS}, {sPB} offen offset:{idx*4}')]

    def ring_init(self, loads, free):
        self.loads = loads
        self.nxt = 0
        self.free = list(free)
        for l in loads: l['page'] = None; l['tok'] = None
    def dma_page(self, l):
        srd, vo, soff, flags = l['srd'], l['vo'], l['soff'], l.get('flags', 'nt')
        l['tok'] = Tok()
        out = [I(f's_add_u32 m0, {sM0B}, {l["page"]*PAGE}')] + list(soff)
        out.append(I(f'buffer_load_dwordx4 v{vo[0]}, {srd}, {sOFF} offen {flags} lds'))
        out.append(I(f'buffer_load_dwordx4 v{vo[1]}, {srd}, {sOFF} offen offset:1024 {flags} lds', l['tok']))
        return out
    def issue_free(self, maxn=99, upto=None):
        out = []
        n = 0
        while self.free and self.nxt < len(self.loads) and n < maxn and (upto is None or self.nxt < upto):
            l = self.loads[self.nxt]
            if l.get('gate') and not l['gate'](): break
            self.nxt += 1
            l['page'] = self.free.pop(0)
            out += self.dma_page(l); n += 1
        return out
    def sync(self, need, release):
        out = []
        for l in need:
            assert l['tok'] is not None, 'page needed but never issued'
            out.append(WaitVM(l['tok']))
        out.append(WaitLGKM0())
        out.append(I('s_barrier'))
        for p in release: self.free.append(p if isinstance(p, int) else p['page'])
        return out

    def win(self, base, nvar, var, addr):
        w = addr >> 16
        return f'v{base + w*nvar + var}', addr & 0xffff

    def pg_win(self, n, ks2, z2):
        c = ks2 * 32 * 3584 + (1792 if z2 else 0)
        return dict(srd=SWIN, vo=vDWIN, soff=[I(f's_add_u32 {sOFF}, {sKIN[n]}, {c}')])
    def pg_qkv(self, n, t):
        return dict(srd=SQKV, vo=vDQKV, soff=[I(f's_add_u32 {sOFF}, {sKQ[n]}, {t*1024}')])
    def pg_sp(self, n):
        return dict(srd=SWSP, vo=vDSP, soff=[I(f's_add_u32 {sOFF}, {sSPP}, {n*128}'), I(f's_and_b32 {sOFF}, {sOFF}, 4095')])
    def pg_out(self, n):
        return dict(srd=SWOUT, vo=vDOUT, soff=[I(f's_mov_b32 {sOFF}, {n*64*1024}')])
    def pg_wo(self, p, n, ks2):
        return dict(srd=SWO, vo=vDWIN, soff=[I(f's_add_u32 {sOFF}, {sKIN[n]}, {ks2*32*1024 + p*256}')])

    def prologue(self):
        o = []
        e = lambda t: o.append(I(t))
        e('s_cmp_ge_u32 s2, 256'); e('s_cbranch_scc1 L_end')
        for srd, off in ((4, 0), (8, 8), (12, 32), (24, 80), (16, 40), (20, 56), (28, 64), (32, 48), (36, 16)):
            e(f's_load_dwordx2 s[{srd}:{srd+1}], s[0:1], {off}')
        e('s_getpc_b64 s[68:69]')
        e('v_lshrrev_b32 v1, 6, v0')
        e('s_lshr_b32 s70, s2, 3')
        e(f'v_readfirstlane_b32 {sW}, v1')
        e('v_lshrrev_b32 v2, 4, v0'); e('s_lshl_b32 s71, s70, 4'); e('v_add_u32 v2, s71, v2'); e('v_lshlrev_b32 v2, 7, v2')
        e('global_load_dword v253, v2, s[68:69]')
        e('v_and_b32 v0, 63, v0')
        e('s_and_b32 s71, s2, 7')
        e('s_lshr_b32 s72, s71, 1'); e('s_lshl_b32 s72, s72, 3'); e('s_lshr_b32 s73, s70, 2'); e(f's_add_u32 {sRB}, s72, s73')
        e('s_and_b32 s72, s71, 1'); e('s_lshl_b32 s72, s72, 2'); e('s_and_b32 s73, s70, 3'); e(f's_add_u32 {sCB}, s72, s73')
        e(f's_lshl_b32 s72, {sCB}, 1'); e(f's_add_u32 s72, s72, {sRB}'); e(f's_and_b32 {sROT}, s72, 7')
        e(f's_lshl_b32 {sROT2}, {sROT}, 2')
        e(f's_lshl_b32 {sM0B}, {sW}, 11')
        for srd, nb in ((4, 2048*1024), (8, 512*3072), (12, 512*3584), (16, 2048*4096), (20, 896*1024), (24, 0x10000000), (28, 2048*1024), (32, 4096), (36, 512*1024)):
            e(f's_mov_b32 s{srd+2}, {nb}'); e(f's_mov_b32 s{srd+3}, 0x20000')
        e(f's_mov_b32 {sONES}, 0x3f803f80'); e(f's_mov_b32 {sLO}, 0x3f80'); e(f's_mov_b32 {sHI}, 0x3f800000')
        e(f'v_lshlrev_b32 {vL16}, 4, v0')
        return o

    def x_loads(self):
        o = []
        e = lambda t: o.append(I(t))
        t = TMP
        e(f'v_and_b32 v{t}, 7, v0'); e(f'v_lshrrev_b32 v{t+1}, 3, v0')
        e(f's_and_b32 s68, {sCB}, 1'); e('s_lshl_b32 s68, s68, 3')
        e(f'v_add_u32 v{t+2}, s68, v{t+1}')
        e(f's_lshl_b32 s69, {sRB}, 6'); e(f's_lshl_b32 s70, {sW}, 4'); e('s_add_u32 s70, s70, s69')
        e(f'v_add_u32 v{t+3}, s70, v{t+2}'); e(f'v_lshlrev_b32 v{t+3}, 10, v{t+3}')
        e(f'v_lshl_add_u32 v{t+3}, v{t}, 4, v{t+3}')
        e(f'v_xor_b32 v{t+4}, 0x2000, v{t+3}')
        o.append(WaitLGKM0())
        e(f's_load_dword {sTAG}, s[24:25], 0')
        e(f's_lshl_b32 s71, {sROT}, 7')
        for G in range(2):
            for n in range(8):
                e(f's_add_u32 s72, s71, {n*128}'); e('s_and_b32 s72, s72, 1023')
                e(f'buffer_load_dwordx4 {vr(64 + G*32 + n*4)}, v{t+3+G}, {SX}, s72 offen nt')
        e(f'v_lshrrev_b32 v{t+12}, 4, v0'); e(f's_lshl_b32 s70, {sW}, 2'); e(f'v_add_u32 v{t+12}, s70, v{t+12}')
        e('s_sub_u32 s69, s69, 16'); e('s_max_i32 s69, s69, 0')
        e(f'v_add_u32 v{t+13}, s69, v{t+12}'); e(f'v_lshlrev_b32 v{t+13}, 10, v{t+13}')
        e(f'v_and_b32 v{t+14}, 15, v0'); e(f'v_lshlrev_b32 v{t+14}, 4, v{t+14}'); e(f'v_add_u32 v{t+14}, s71, v{t+14}')
        e('s_movk_i32 s72, 1023')
        for n in range(4):
            e(f'v_add_u32 v{t+8+n}, {n*256}, v{t+14}')
            e(f'v_and_or_b32 v{t+8+n}, v{t+8+n}, s72, v{t+13}')
            e(f'buffer_load_dwordx4 {vr(128 + n*4)}, v{t+8+n}, {SX}, 0 offen nt')
        return o

    def addr_setup(self, role):
        o = []
        e = lambda t: o.append(I(t))
        t = TMP
        a, b, c, d = t+16, t+17, t+18, t+19
        e(f'v_and_b32 v{a}, 6, v{t+1}'); e(f'v_xor_b32 v{a}, v{a}, v{t}'); e(f'v_lshlrev_b32 v{a}, 4, v{a}')
        e(f'v_lshrrev_b32 v{b}, 5, v0'); e(f'v_lshlrev_b32 v{b}, 3, v{b}'); e(f'v_and_b32 v{c}, 3, v{t+1}'); e(f'v_add_u32 v{b}, v{b}, v{c}')
        e(f's_and_b32 s68, {sW}, 1'); e(f's_lshr_b32 s69, {sW}, 1')
        if role == 'Z':
            e('s_lshl_b32 s70, s68, 2'); e(f'v_add_u32 v{c}, s70, v{b}'); e(f'v_mul_u32_u24 v{c}, 3584, v{c}')
            e(f's_lshl_b32 s70, {sCB}, 8'); e('s_lshl_b32 s72, s69, 7'); e('s_add_u32 s70, s70, s72')
            e(f'v_add3_u32 v{vDWIN[0]}, v{c}, v{a}, s70'); e(f'v_add_u32 v{vDWIN[1]}, {16*3584-1024}, v{vDWIN[0]}')
        else:
            e('s_lshl_b32 s70, s68, 4'); e(f'v_add_u32 v{c}, s70, v{t+1}'); e(f'v_lshlrev_b32 v{c}, 10, v{c}')
            e('s_lshl_b32 s70, s69, 7')
            e(f'v_add3_u32 v{vDWIN[0]}, v{c}, v{a}, s70'); e(f'v_add_u32 v{vDWIN[1]}, {8*1024-1024}, v{vDWIN[0]}')
        e('s_lshl_b32 s70, s68, 2'); e('s_lshl_b32 s72, s69, 5'); e('s_add_u32 s70, s70, s72')
        e(f'v_add_u32 v{c}, s70, v{b}'); e(f'v_mul_u32_u24 v{c}, 3072, v{c}')
        e(f's_lshl_b32 s70, {sCB}, 7')
        e(f'v_add3_u32 v{vDQKV[0]}, v{c}, v{a}, s70'); e(f'v_add_u32 v{vDQKV[1]}, {16*3072-1024}, v{vDQKV[0]}')
        for n in range(8):
            e(f's_add_u32 s72, {sROT}, {n}'); e('s_and_b32 s72, s72, 7')
            e(f's_mul_i32 {sKIN[n]}, s72, {64*3584 if role == "Z" else 64*1024}'); e(f's_mul_i32 {sKQ[n]}, s72, {64*3072}')
        return o

    def addr_setup2(self, role):
        o = []
        e = lambda t: o.append(I(t))
        t = TMP
        a, b, c, d = t+16, t+17, t+18, t+19
        e(f's_lshl_b32 s72, {sW}, 4'); e(f'v_add_u32 v{c}, s72, v{t+1}'); e(f'v_lshlrev_b32 v{d}, 10, v{c}')
        e(f's_lshl_b32 s70, {sCB}, 7')
        e(f'v_add3_u32 v{vDOUT[0]}, v{d}, v{a}, s70'); e(f'v_add_u32 v{vDOUT[1]}, {8*1024-1024}, v{vDOUT[0]}')
        e(f's_lshl_b32 s70, {sRB}, 6'); e(f'v_add_u32 v{c}, s70, v{c}'); e(f'v_lshlrev_b32 v{c}, 12, v{c}')
        e(f'v_lshrrev_b32 v{d}, 4, v0'); e(f'v_xor_b32 v{d}, v{d}, v{t}')
        e(f'v_lshl_add_u32 v{vDSP[0]}, v{d}, 4, v{c}')
        e(f'v_xor_b32 v{vDSP[1]}, 64, v{vDSP[0]}'); e(f'v_add_u32 v{vDSP[1]}, {8*4096-1024}, v{vDSP[1]}')
        e(f's_lshl_b32 {sSPP}, {sROT2}, 7')
        e(f's_cmp_eq_u32 {sRB}, 0'); e(f's_cselect_b32 {sBIAS}, {hex(f2u(-1e30))}, 0')
        e(f'v_lshrrev_b32 v{c}, 2, v{t}'); e(f'v_lshlrev_b32 v{c}, 10, v{c}')
        e(f'v_and_b32 v{d}, 3, v{t}'); e(f'v_lshl_add_u32 v{c}, v{d}, 8, v{c}')
        e(f'v_xor_b32 v{d}, v{t+2}, v{t}'); e(f'v_lshl_add_u32 v{t+5}, v{d}, 4, v{c}'); e(f'v_add_u32 v{t+5}, {sM0B}, v{t+5}')
        e(f'v_xor_b32 v{t+6}, 128, v{t+5}')
        e(f'v_xor_b32 v{d}, v{t+12}, v{t}'); e(f'v_lshl_add_u32 v{t+7}, v{d}, 4, v{c}')
        e(f'v_and_b32 v{d}, 1, v{t+1}'); e(f'v_lshl_add_u32 v{t+7}, v{d}, 11, v{t+7}'); e(f'v_add_u32 v{t+7}, 0x10000, v{t+7}')
        e(f'v_and_b32 v{c}, 15, v0'); e(f'v_lshrrev_b32 v{d}, 4, v0')
        e(f'v_xor_b32 v{b}, v{c}, v{d}'); e(f'v_lshlrev_b32 v{b}, 4, v{b}'); e(f'v_lshl_add_u32 v{vXR[0]}, v{d}, 8, v{b}')
        e(f'v_xor_b32 v{vXR[1]}, {64 + 1024}, v{vXR[0]}')
        e(f'v_add_u32 v{vXH[0]}, 0x10000, v{vXR[0]}'); e(f'v_add_u32 v{vXH[1]}, 0x10000, v{vXR[1]}')
        e(f'v_lshrrev_b32 v{b}, 2, v0'); e(f'v_lshlrev_b32 v{b}, 7, v{b}')
        e(f'v_and_b32 v{c}, 3, v0'); e(f'v_lshl_add_u32 v{b}, v{c}, 3, v{b}')
        e(f'v_and_b32 v{c}, 3, v{t+1}'); e(f'v_lshl_add_u32 v{b}, v{c}, 5, v{b}')
        e(f's_lshl_b32 s70, {sW}, 5'); e(f'v_xor_b32 v{vTRC}, s70, v{b}')
        e(f's_and_b32 s70, {sW}, 1'); e('s_lshl_b32 s70, s70, 6'); e(f's_lshr_b32 s72, {sW}, 1'); e('s_lshl_b32 s72, s72, 12'); e('s_or_b32 s70, s70, s72')
        e(f'v_xor_b32 v{vTRZ}, s70, v{b}'); e(f'v_xor_b32 v{vTRZ+1}, 32, v{vTRZ}')
        for w in (1, 2):
            e(f'v_add_u32 v{vTRC+w}, {w*0x10000}, v{vTRC}')
            for cc in range(2): e(f'v_add_u32 v{vTRZ+2*w+cc}, {w*0x10000}, v{vTRZ+cc}')
        e(f's_lshl_b32 s70, {sW}, 6'); e(f's_add_u32 s70, s70, {RS + 64}')
        e(f'v_lshl_add_u32 v{t+8}, v{t+2}, 2, s70'); e(f'v_xor_b32 v{t+9}, 32, v{t+8}')
        e(f's_mov_b32 s70, {RS}'); e(f'v_lshl_add_u32 v{t+10}, v{t+12}, 2, s70')
        return o

    def ln_group(self, X, nreg, ldsaddr, ldsstep, rsaddr, nsteps):
        o = []
        e = lambda t: o.append(I(t))
        s, q, lo = TMP+20, TMP+21, 144
        dpp = ['quad_perm:[1,0,3,2]', 'quad_perm:[2,3,0,1]', 'row_half_mirror', 'row_mirror'][:nsteps]
        e(f'v_mov_b32 v{s}, 0'); e(f'v_mov_b32 v{q}, 0')
        for i in range(nreg): e(f'v_dot2c_f32_bf16 v{s}, {sONES}, v{X+i}')
        for m in dpp: e(f'v_add_f32_dpp v{s}, v{s}, v{s} {m} row_mask:0xf bank_mask:0xf')
        e(f'v_mul_f32 v{s}, {hex(f2u(-1.0/512))}, v{s}')
        for n in range(nreg // 4):
            for i in range(4):
                e(f'v_dot2_f32_bf16 v{lo+2*i}, v{X+4*n+i}, {sLO}, v{s}')
                e(f'v_dot2_f32_bf16 v{lo+2*i+1}, v{X+4*n+i}, {sHI}, v{s}')
            for i in range(4):
                e(f'v_cvt_pk_bf16_f32 v{X+4*n+i}, v{lo+2*i}, v{lo+2*i+1}')
            e(f'ds_write_b128 v{ldsaddr}, {vr(X+4*n)} offset:{n*ldsstep}')
        for i in range(nreg): e(f'v_dot2c_f32_bf16 v{q}, v{X+i}, v{X+i}')
        for m in dpp: e(f'v_add_f32_dpp v{q}, v{q}, v{q} {m} row_mask:0xf bank_mask:0xf')
        e(f'v_mov_b32 v{s}, {hex(f2u(1e-5))}')
        e(f'v_fmac_f32 v{s}, {hex(f2u(1.0/512))}, v{q}')
        e(f'v_rsq_f32 v{s}, v{s}')
        e(f'ds_write_b32 v{rsaddr}, v{s}')
        return o

    def xa(self, p, ks2, rt): return (p*8 + ks2*4 + rt) * 4
    def rd_xn(self, p, halo=True):
        o = []
        for ks2 in range(2):
            for rt in range(4):
                o.append(I(f'ds_read_b128 {ar(self.xa(p, ks2, rt))}, v{vXR[ks2]} offset:{p*PAGE + rt*2048}'))
            if halo:
                o.append(I(f'ds_read_b128 {vr(HALO + (p*2+ks2)*4)}, v{vXH[ks2]} offset:{p*2048}'))
        return o
    def rd_z(self, pages, buf):
        o = []
        for ks2 in range(2):
            for c in range(2):
                for h in range(2):
                    v, off = self.win(vTRZ, 2, c, pages[ks2]['page']*PAGE + h*2048)
                    o.append(I(f'ds_read_b64_tr_b16 {vr(FB + buf*24 + (ks2*2+c)*4 + 2*h, 2)}, {v} offset:{off}'))
        return o
    def mf_z(self, p, buf, acc, first):
        o = []
        for ks2 in range(2):
            for c in range(2):
                for rt in range(4):
                    o.append(MF(acc + (rt*2+c)*4, vr(FB + buf*24 + (ks2*2+c)*4), ar(self.xa(p, ks2, rt)), '0' if first and ks2 == 0 else None))
        return o
    def rd_c(self, pages, buf):
        o = []
        for ks2 in range(2):
            for t in range(3):
                for h in range(2):
                    v, off = self.win(vTRC, 1, 0, pages[t]['page']*PAGE + ks2*4096 + h*2048)
                    o.append(I(f'ds_read_b64_tr_b16 {vr(FB + buf*24 + (ks2*3+t)*4 + 2*h, 2)}, {v} offset:{off}'))
        return o
    def mf_c(self, p, buf, first):
        o = []
        for ks2 in range(2):
            z = '0' if first and ks2 == 0 else None
            f = lambda t: vr(FB + buf*24 + (ks2*3+t)*4)
            x = lambda T: vr(HALO + (p*2+ks2)*4) if T == 0 else ar(self.xa(p, ks2, T-1))
            for rt in range(4): o.append(MF(QA + rt*4, f(0), x(rt+1), z))
            for T in range(5): o.append(MF(KA + T*4, f(1), x(T), z))
            for T in range(5): o.append(MF(VA + T*4, x(T), f(2), z))
        return o

    def run_stages(self, stages, bgs=(), first_reads_done=False):
        o = []
        for i, st in enumerate(stages):
            nx = stages[i+1] if i + 1 < len(stages) else None
            rel = st['pages'] + st.get('rel', [])
            if st.get('mf') is None:
                break
            o += self.sync(nx['pages'] if nx else [], rel)
            high = (nx['reads'](nx['buf']) if nx else []) + self.issue_free()
            o += weave(st['mf'](st['buf']), high, bgs)
            o += st.get('post', [])
        return o

    def gelu(self, acc, npk=True):
        o = []
        e = lambda t: o.append(I(t))
        cc = TMP
        t = TMP + 8
        for rt in range(4):
            r = vR + 1 + rt
            e(f'v_mul_f32 v{cc+2*rt+1}, {hex(f2u(GC0))}, v{r}')
            e(f'v_mul_f32 v{cc+2*rt}, v{r}, v{r}')
            e(f'v_mul_f32 v{cc+2*rt}, v{cc+2*rt}, v{r}')
            e(f'v_mul_f32 v{cc+2*rt}, {hex(f2u(GC1))}, v{cc+2*rt}')
        for rt in range(4):
            a = acc + rt*8
            c = vr(cc + 2*rt, 2)
            if npk:
                for i in range(4): e(f'v_pk_mul_f32 {vr(t+2*i,2)}, {vr(a+2*i,2)}, {vr(a+2*i,2)}')
                for i in range(4): e(f'v_pk_fma_f32 {vr(t+2*i,2)}, {vr(t+2*i,2)}, {c}, {c} op_sel:[0,0,1] op_sel_hi:[1,0,1]')
                for i in range(4): e(f'v_pk_mul_f32 {vr(t+2*i,2)}, {vr(t+2*i,2)}, {vr(a+2*i,2)}')
                for i in range(8): e(f'v_exp_f32 v{t+i}, v{t+i}')
                for i in range(4): e(f'v_pk_add_f32 {vr(t+2*i,2)}, {vr(t+2*i,2)}, 1.0 op_sel_hi:[1,0]')
                for i in range(8): e(f'v_rcp_f32 v{t+i}, v{t+i}')
                for i in range(4): e(f'v_pk_mul_f32 {vr(a+2*i,2)}, {vr(a+2*i,2)}, {vr(t+2*i,2)}')
            else:
                for i in range(8): e(f'v_mul_f32 v{t+i}, v{a+i}, v{a+i}')
                for i in range(8): e(f'v_fma_f32 v{t+i}, v{t+i}, v{cc+2*rt}, v{cc+2*rt+1}')
                for i in range(8): e(f'v_mul_f32 v{t+i}, v{t+i}, v{a+i}')
                for i in range(8): e(f'v_exp_f32 v{t+i}, v{t+i}')
                for i in range(8): e(f'v_add_f32 v{t+i}, 1.0, v{t+i}')
                for i in range(8): e(f'v_rcp_f32 v{t+i}, v{t+i}')
                for i in range(8): e(f'v_mul_f32 v{a+i}, v{a+i}, v{t+i}')
        return o

    def allred4(self, regs, tmps, op):
        o = []
        for sw in ('v_permlane16_swap_b32', 'v_permlane32_swap_b32'):
            for r, t in zip(regs, tmps): o.append(I(f'v_mov_b32 v{t}, v{r}'))
            for r, t in zip(regs, tmps): o.append(I(f'{sw} v{r}, v{t}'))
            for r, t in zip(regs, tmps): o.append(I(f'{op} v{r}, v{r}, v{t}'))
        return o

    def stats_publish(self):
        o = []
        e = lambda t: o.append(I(t))
        t = TMP
        for rt in range(4):
            a = ACCA + rt*8
            e(f'v_pk_add_f32 {vr(t,2)}, {vr(a,2)}, {vr(a+2,2)}'); e(f'v_pk_mul_f32 {vr(t+2,2)}, {vr(a,2)}, {vr(a,2)}')
            e(f'v_pk_add_f32 {vr(t+4,2)}, {vr(a+4,2)}, {vr(a+6,2)}')
            for i in range(1, 4): e(f'v_pk_fma_f32 {vr(t+2,2)}, {vr(a+2*i,2)}, {vr(a+2*i,2)}, {vr(t+2,2)}')
            e(f'v_pk_add_f32 {vr(t,2)}, {vr(t,2)}, {vr(t+4,2)}')
            e(f'v_add_f32 v{t+12+rt}, v{t+2}, v{t+3}')
            e(f'v_add_f32 v{t+8+rt}, v{t}, v{t+1}')
        for b in (t+8, t+12):
            e(f'v_permlane16_swap_b32 v{b}, v{b+1}'); e(f'v_permlane16_swap_b32 v{b+2}, v{b+3}')
        for b in (t+8, t+12):
            e(f'v_add_f32 v{b}, v{b}, v{b+1}'); e(f'v_add_f32 v{b+2}, v{b+2}, v{b+3}')
        for b in (t+8, t+12): e(f'v_permlane32_swap_b32 v{b}, v{b+2}')
        e(f'v_add_f32 v{t}, v{t+8}, v{t+10}'); e(f'v_add_f32 v{t+1}, v{t+12}, v{t+14}')
        e(f's_lshl_b32 s68, {sW}, 3'); e(f's_add_u32 s68, s68, {STA}')
        e(f'v_lshl_add_u32 v{t+2}, v0, 5, s68')
        e(f'ds_write_b64 v{t+2}, {vr(t,2)}')
        e(f'v_and_b32 v{t+3}, 15, v0'); e(f'v_lshrrev_b32 v{t+4}, 4, v0')
        e(f's_lshl_b32 s68, {sW}, 9'); e(f's_add_u32 s68, s68, {STA}')
        e(f'v_lshl_add_u32 v{t+2}, v{t+3}, 5, s68'); e(f'v_lshl_add_u32 v{t+2}, v{t+4}, 3, v{t+2}')
        o.append(WaitLGKM0()); e('s_barrier')
        e(f'ds_read_b64 {vr(t+8,2)}, v{t+2}')
        e(f's_lshl_b32 s68, {sRB}, 3'); e(f's_add_u32 s68, s68, {sCB}'); e('s_lshl_b32 s68, s68, 10')
        e(f's_lshl_b32 s69, {sW}, 8'); e('s_add_u32 s68, s68, s69'); e(f's_add_u32 s68, s68, {WS_STATS}')
        e(f'v_lshlrev_b32 v{t+2}, 4, v{t+3}')
        e(f'v_mov_b32 v{t+10}, {sTAG}'); e(f'v_mov_b32 v{t+11}, {sTAG}')
        o += self.allred4([t+8, t+9], [t+4, t+5], 'v_add_f32')
        e(f'buffer_store_dwordx4 {vr(t+8)}, v{t+2}, {SWS}, s68 offen sc1')
        return o

    def checked_load(self, loads, cmps, name):
        lab, back = self.label(name), self.label(name + 'b')
        chk = [I(c) for c in cmps] + [I(f's_cbranch_vccnz {lab}'), I(f'{back}:')]
        s = [f'{lab}:', f's_mov_b32 {sCNT}, 0', f'{lab}_l:'] + loads + [f's_add_u32 {sCNT}, {sCNT}, 1', 's_waitcnt vmcnt(0)']
        for c in cmps: s += [c, 's_nop 1']
        s += [f's_cmp_gt_u32 {sCNT}, {SPIN}', f's_cbranch_scc1 {back}', f's_cbranch_vccnz {lab}_l', f's_branch {back}']
        self.slow += s
        return [I(l) for l in loads], chk

    def stats_recv_norm(self, d1, d2):
        o = []
        e = lambda t: o.append(I(t))
        t = TMP
        o.append(('delay', d1))
        e(f'v_and_b32 v{t+8}, 15, v0'); e(f'v_lshrrev_b32 v{t+9}, 4, v0')
        e(f'v_lshlrev_b32 v{t+10}, 4, v{t+8}'); e(f'v_lshl_add_u32 v{t+10}, v{t+9}, 10, v{t+10}')
        e(f's_lshl_b32 {sO1}, {sRB}, 13'); e(f's_lshl_b32 {sO2}, {sW}, 8'); e(f's_add_u32 {sO1}, {sO1}, {sO2}'); e(f's_add_u32 {sO1}, {sO1}, {WS_STATS}')
        e(f's_add_u32 {sO2}, {sO1}, 4096')
        iss, chk = self.checked_load([f'buffer_load_dwordx4 {vr(t)}, v{t+10}, {SWS}, {sO1} offen sc1',
                                      f'buffer_load_dwordx4 {vr(t+4)}, v{t+10}, {SWS}, {sO2} offen sc1'],
                                     [f'v_xor_b32 v{t+11}, {sTAG}, v{t+2}', f'v_xor_b32 v{t+12}, {sTAG}, v{t+7}',
                                      f'v_or_b32 v{t+11}, v{t+11}, v{t+12}', f'v_cmp_ne_u32 vcc, 0, v{t+11}'], 'st')
        o += iss
        e(f's_lshl_b32 {sO3}, {sW}, 6'); e(f's_add_u32 {sO3}, {sO3}, {RS + 64}')
        e(f'v_lshl_add_u32 v{t+13}, v{t+8}, 2, {sO3}')
        e(f'ds_read_b32 v{t+13}, v{t+13}')
        o.append(('delay', d2))
        o += chk
        e(f'v_add_f32 v{t}, v{t}, v{t+4}'); e(f'v_add_f32 v{t+1}, v{t+1}, v{t+5}')
        o += self.allred4([t, t+1], [t+2, t+3], 'v_add_f32')
        e(f'v_mul_f32 v{t+13}, v{t+13}, v{t+13}')
        e(f'v_mul_f32 v{t}, {hex(f2u(1.0/896))}, v{t}')
        e(f'v_rcp_f32 v{t+13}, v{t+13}')
        e(f'v_mul_f32 v{t+1}, {hex(f2u(1.0/896))}, v{t+1}')
        e(f'v_fma_f32 v{t+1}, -v{t}, v{t}, v{t+1}')
        e(f'v_max_f32 v{t+1}, 0, v{t+1}')
        e(f'v_fmac_f32 v{t+1}, {hex(f2u(1e-5))}, v{t+13}')
        e(f'v_rsq_f32 v{t+2}, v{t+1}')
        e(f's_lshl_b32 {sO3}, {sW}, 7'); e(f's_add_u32 {sO3}, {sO3}, {STB}')
        e(f'v_mul_f32 v{t+3}, -v{t}, v{t+2}')
        e(f'v_lshl_add_u32 v{t+4}, v{t+8}, 3, {sO3}')
        e(f'ds_write_b64 v{t+4}, {vr(t+2,2)}')
        e(f's_mov_b32 {sO3}, {STB}')
        e(f'v_lshl_add_u32 v{t+12}, v{t+8}, 3, {sO3}')
        o.append(WaitLGKM0()); e('s_barrier')
        for rt in range(4): e(f'ds_read_b64 {vr(t+2*rt,2)}, v{t+12} offset:{rt*128}')
        e(f'v_bfe_u32 v{t+10}, v0, 1, 2'); e(f'v_xor_b32 v{t+10}, v{t+10}, v{t+9}'); e(f'v_lshlrev_b32 v{t+10}, 4, v{t+10}')
        e(f'v_lshl_add_u32 v{t+10}, v{t+8}, 6, v{t+10}')
        e(f's_add_u32 {sO3}, {sM0B}, {PG_TR*PAGE}')
        e(f'v_add_u32 v{t+10}, {sO3}, v{t+10}')
        e(f'v_bfe_u32 v{t+11}, v0, 3, 1'); e(f'v_and_b32 v{t+12}, 3, v0'); e(f'v_xor_b32 v{t+11}, v{t+11}, v{t+12}'); e(f'v_lshlrev_b32 v{t+11}, 4, v{t+11}')
        e(f'v_bfe_u32 v{t+12}, v0, 2, 2'); e(f'v_lshl_add_u32 v{t+11}, v{t+12}, 6, v{t+11}'); e(f'v_lshl_add_u32 v{t+11}, v{t+9}, 9, v{t+11}')
        e(f'v_add_u32 v{t+11}, {sO3}, v{t+11}')
        e(f'v_xor_b32 v{t+12}, {32 + 256}, v{t+11}')
        e(f's_lshl_b32 {sO1}, {sCB}, 2'); e(f's_add_u32 {sO1}, {sO1}, {sW}'); e(f's_lshl_b32 {sO2}, {sO1}, 17'); e(f's_add_u32 {sZB}, {sO2}, {WS_Z2N}')
        e(f's_lshl_b32 {sO2}, {sRB}, 12'); e(f's_add_u32 {sO2}, {sO2}, {sZB}')
        e(f's_lshl_b32 {sO1}, {sO1}, 7'); e(f's_add_u32 {sO4}, {sO1}, {WS_FLAGZ}')
        e(f's_lshl_b32 {sO1}, {sRB}, 2'); e(f's_add_u32 {sO1}, {sO1}, {sO4}')
        tok = Tok()
        for ks in range(2):
            for rt in (2*ks, 2*ks+1):
                a = ACCA + rt*8
                for i in range(8): e(f'v_fma_f32 v{a+i}, v{a+i}, v{t+2*rt}, v{t+2*rt+1}')
                for i in range(4): e(f'v_cvt_pk_bf16_f32 v{a+i}, v{a+2*i}, v{a+2*i+1}')
                e(f'ds_write_b128 v{t+10}, {vr(a)} offset:{(rt&1)*1024}')
            for c in range(2):
                d = ACCA + ks*16 + c*8 + 4
                e(f'ds_read_b64_tr_b16 {vr(d,2)}, v{t+11} offset:{c*8}')
                e(f'ds_read_b64_tr_b16 {vr(d+2,2)}, v{t+12} offset:{c*8}')
        o.append(('delay', 4))
        for ks in range(2):
            for c in range(2):
                d = ACCA + ks*16 + c*8 + 4
                o.append(I(f'buffer_store_dwordx4 {vr(d)}, {vL16}, {SWS}, {sO2} offen offset:{(ks*2+c)*1024} sc1', tok if ks*2+c == 3 else None))
        e(f'v_mov_b32 v{t}, {sTAG}'); e(f'v_mov_b32 v{t+1}, 0')
        o.append(('delay', 60))
        o.append(WaitVM(tok))
        e(f'buffer_store_dword v{t}, v{t+1}, {SWS}, {sO1} offen sc1')
        return o

    def attention(self, T0):
        o = []
        e = lambda t: o.append(I(t))
        t = T0
        rv = t
        sel = t + 20
        ones = t + 24
        x = t + 28
        e(f'v_and_b32 v{x}, 15, v0'); e(f'v_lshrrev_b32 v{x+1}, 4, v0'); e(f'v_and_b32 v{x+2}, 1, v0')
        e(f'v_lshlrev_b32 v{x+3}, 4, v{x+1}'); e(f'v_add_u32 v{x+3}, {RS}, v{x+3}')
        for T in range(5): e(f'ds_read_b128 {vr(rv+4*T)}, v{x+3} offset:{T*64}')
        e(f'v_cmp_eq_u32 {mP}, 1, v{x+2}')
        e(f'v_lshl_add_u32 v{x+1}, v{x+1}, 2, v{x+2}')
        e(f'v_cmp_le_u32 {mA}, v{x+1}, v{x}')
        e(f'v_add_u32 v{x+1}, 2, v{x+1}')
        e(f'v_cmp_le_u32 {mB}, v{x+1}, v{x}')
        e(f'v_mov_b32 v{x}, 0x0c0c0100'); e(f'v_mov_b32 v{x+1}, 0x01000c0c'); e(f'v_mov_b32 v{x+2}, 0x0c0c0c0c')
        e(f'v_cndmask_b32 v{x}, v{x}, v{x+1}, {mP}')
        e(f'v_cndmask_b32 v{sel}, v{x}, v{x+2}, {mA}'); e(f'v_cndmask_b32 v{sel+2}, v{x+2}, v{x}, {mA}')
        e(f'v_mov_b32 v{x}, 0x0c0c0302'); e(f'v_mov_b32 v{x+1}, 0x03020c0c')
        e(f'v_cndmask_b32 v{x}, v{x}, v{x+1}, {mP}')
        e(f'v_cndmask_b32 v{sel+1}, v{x}, v{x+2}, {mB}'); e(f'v_cndmask_b32 v{sel+3}, v{x+2}, v{x}, {mB}')
        for i in range(4): e(f'v_mov_b32 v{ones+i}, {sONES}')
        for rt in range(4):
            e(f'v_mul_f32 v{x}, {hex(f2u(0.25*LOG2E))}, v{vR+1+rt}')
            for i in range(4): e(f'v_mul_f32 v{QA+4*rt+i}, v{x}, v{QA+4*rt+i}')
            for i in range(2): e(f'v_cvt_pk_bf16_f32 v{QA+2*rt+i}, v{QA+4*rt+2*i}, v{QA+4*rt+2*i+1}')
        for T in range(5):
            for i in range(4): e(f'v_mul_f32 v{KA+4*T+i}, v{vR+T}, v{KA+4*T+i}')
            for i in range(2): e(f'v_cvt_pk_bf16_f32 v{KA+2*T+i}, v{KA+4*T+2*i}, v{KA+4*T+2*i+1}')
        for T in range(5):
            for i in range(4): e(f'v_mul_f32 v{VA+4*T+i}, v{rv+4*T+i}, v{VA+4*T+i}')
            for i in range(2): e(f'v_cvt_pk_bf16_f32 v{VA+2*T+i}, v{VA+4*T+2*i}, v{VA+4*T+2*i+1}')
        for i in range(4): e(f'v_mov_b32 v{x+i}, {sBIAS}')
        SC = [(rv, rv+4), (rv+8, rv+12), (rv+16, QA+8), (QA+12, KA+12)]
        for rt in range(4):
            p, c = SC[rt]
            o.append(MF(p, vr(KA+2*rt, 2), vr(QA+2*rt, 2), vr(x) if rt == 0 else '0', k=16))
            o.append(MF(c, vr(KA+2*rt+2, 2), vr(QA+2*rt, 2), '0', k=16))
        o.append(('delay', 2))
        for rt in range(4):
            p, c = SC[rt]
            e(f'v_cndmask_b32 v{p}, v{p}, v{p+1}, {mP}'); e(f'v_cndmask_b32 v{p+2}, v{p+2}, v{p+3}, {mP}')
            e(f'v_cndmask_b32 v{c}, v{c}, v{c+1}, {mP}'); e(f'v_cndmask_b32 v{c+2}, v{c+2}, v{c+3}, {mP}')
            e(f'v_cndmask_b32 v{c}, v{p}, v{c}, {mA}'); e(f'v_cndmask_b32 v{c+1}, v{p+2}, v{c+2}, {mB}')
            e(f'v_max_f32 v{c+2}, v{c}, v{c+1}')
        o += self.allred4([SC[rt][1]+2 for rt in range(4)], [SC[rt][1]+3 for rt in range(4)], 'v_max_f32')
        for rt in range(4):
            p, c = SC[rt]
            e(f'v_sub_f32 v{c}, v{c}, v{c+2}'); e(f'v_sub_f32 v{c+1}, v{c+1}, v{c+2}')
        for rt in range(4):
            p, c = SC[rt]
            e(f'v_exp_f32 v{c}, v{c}'); e(f'v_exp_f32 v{c+1}, v{c+1}')
        for rt in range(4):
            p, c = SC[rt]
            e(f'v_cvt_pk_bf16_f32 v{c}, v{c}, v{c+1}')
            for i in range(4): e(f'v_perm_b32 v{p+i}, v{c}, v{c}, v{sel+i}')
        DEN = [QA, QA+4, KA, KA+4]
        for rt in range(4):
            p, c = SC[rt]
            o.append(MF(c, vr(VA+2*rt), vr(p), '0'))
            o.append(MF(DEN[rt], vr(ones), vr(p), '0'))
        e(f's_lshl_b32 s74, {sRB}, 5'); e(f's_lshl_b32 s75, {sCB}, 2'); e('s_add_u32 s74, s74, s75'); e(f's_add_u32 s74, s74, {sW}')
        e('s_lshl_b32 s75, s74, 2'); e(f's_add_u32 s75, s75, {WS_FLAGO}')
        e('s_lshl_b32 s74, s74, 11'); e(f's_add_u32 s74, s74, {WS_O}')
        e(f'v_lshlrev_b32 v{x}, 3, v0'); e(f'v_mov_b32 v{x+1}, {sTAG}'); e(f'v_mov_b32 v{x+2}, 0')
        for rt in range(4): e(f'v_rcp_f32 v{DEN[rt]}, v{DEN[rt]}')
        tok = Tok()
        for rt in range(4):
            p, c = SC[rt]
            for i in range(4): e(f'v_mul_f32 v{c+i}, v{c+i}, v{DEN[rt]}')
            for i in range(2): e(f'v_cvt_pk_bf16_f32 v{c+i}, v{c+2*i}, v{c+2*i+1}')
            o.append(I(f'buffer_store_dwordx2 {vr(c,2)}, v{x}, {SWS}, s74 offen offset:{rt*512} sc1', tok if rt == 3 else None))
        o.append(('delay', 60))
        o.append(WaitVM(tok))
        e(f'buffer_store_dword v{x+1}, v{x+2}, {SWS}, s75 offen sc1')
        return o

    def flush(self, bg):
        o = []
        while not bg.empty():
            x = bg.pop()
            if not isinstance(x, tuple): o.append(x)
        bg.delay = 0
        return o

    def poll(self, soff, name):
        t = TMP + 22
        o = [I(f'v_and_b32 v{t}, 31, v0'), I(f'v_lshlrev_b32 v{t}, 2, v{t}')]
        iss, chk = self.checked_load([f'buffer_load_dword v{t+1}, v{t}, {SWS}, {soff} offen sc1'], [f'v_cmp_ne_u32 vcc, {sTAG}, v{t+1}'], name)
        return o + iss, chk

    def p3(self, outp):
        o = []
        e = lambda t: o.append(I(t))
        t = TMP
        HB, XF, SF, ACC, TRB, WB = 64, 32, 48, 176, 12, 192
        o += self.sync([], list(self.pending_release)); self.pending_release = []
        o += self.issue_free()
        assert self.nxt == len(self.loads)
        e(f'v_lshrrev_b32 v{t}, 3, v0'); e(f'v_and_b32 v{t+1}, 7, v0'); e(f'v_xor_b32 v{t+1}, v{t+1}, v{t}')
        e(f's_lshl_b32 s68, {sRB}, 6'); e(f's_lshl_b32 s69, {sW}, 4'); e('s_add_u32 s68, s68, s69'); e('s_lshl_b32 s68, s68, 10')
        e(f's_lshl_b32 s69, {sCB}, 7'); e(f's_add_u32 {sO1}, s68, s69')
        e(f'v_lshlrev_b32 v{t+2}, 10, v{t}'); e(f'v_lshl_add_u32 v{t+2}, v{t+1}, 4, v{t+2}'); e(f'v_add_u32 v{t+3}, {8*1024-1024}, v{t+2}')
        e(f's_add_u32 m0, {sM0B}, {PG_TR*PAGE}')
        tx = Tok()
        e(f'buffer_load_dwordx4 v{t+2}, {SX}, {sO1} offen lds')
        o.append(I(f'buffer_load_dwordx4 v{t+3}, {SX}, {sO1} offen offset:1024 lds', tx))
        e(f'v_add_u32 v{t+3}, 1024, v{t+3}')
        e(f'v_and_b32 v{t+4}, 15, v0'); e(f'v_lshrrev_b32 v{t+5}, 5, v0'); e(f'v_and_b32 v{t+6}, 7, v0'); e(f'v_xor_b32 v{t+5}, v{t+5}, v{t+6}')
        e(f'v_lshlrev_b32 v{t+5}, 4, v{t+5}'); e(f'v_lshl_add_u32 v{t+5}, v{t+4}, 7, v{t+5}')
        e(f'v_bfe_u32 v{t+6}, v0, 4, 1'); e(f'v_lshl_add_u32 v{t+5}, v{t+6}, 3, v{t+5}')
        e(f's_add_u32 s68, {sM0B}, {PG_TR*PAGE}'); e(f'v_add_u32 v{t+4}, s68, v{t+5}')
        for c in range(1, 4): e(f'v_xor_b32 v{t+4+c}, {32*c}, v{t+4}')
        e(f'v_add_u32 v{t+8}, s68, {vL16}')
        e(f's_lshl_b32 s68, {sW}, 5'); e(f'v_xor_b32 v{t+9}, s68, v{vTRC}')
        for w in range(3):
            for u in range(4):
                e(f'v_xor_b32 v{TRB+w*4+u}, {32*u + w*0x10000}, v{t+9}')
        e(f's_lshl_b32 s68, {sRB}, 7'); e(f's_add_u32 {sO2}, s68, {WS_FLAGH}')
        e(f's_lshl_b32 s68, {sRB}, 2'); e(f's_add_u32 s68, s68, {sW}'); e(f's_mul_i32 s68, s68, {28*1024}'); e(f's_add_u32 {sO3}, s68, {WS_H}')
        e(f's_lshl_b32 s68, {sRB}, 3'); e(f's_add_u32 s68, s68, {sCB}'); e('s_lshl_b32 s68, s68, 2'); e(f's_add_u32 s68, s68, {sW}')
        e('s_lshl_b32 s68, s68, 11'); e(f's_add_u32 {sO4}, s68, {WS_S}')
        o.append(WaitVM(tx))
        for c in range(4): e(f'ds_read_b64 {vr(XF+4*c+2,2)}, v{t+4+c}')
        o += self.sync(outp, [])
        for c in range(4):
            b = XF + 4*c
            e(f'v_lshlrev_b32 v{b}, 16, v{b+2}'); e(f'v_and_b32 v{b+1}, 0xffff0000, v{b+2}')
            e(f'v_lshlrev_b32 v{b+2}, 16, v{b+3}'); e(f'v_and_b32 v{b+3}, 0xffff0000, v{b+3}')
        def wf(ks, u):
            if ks < 16: return ar((ks*4+u)*4)
            return vr(WB + ((ks & 1)*4 + u)*4)
        def rd_w(ks):
            r = []
            for u in range(4):
                for h in range(2):
                    v, off = self.win(TRB, 4, u, outp[ks >> 1]['page']*PAGE + (ks & 1)*4096 + h*2048)
                    d = (ar((ks*4+u)*4 + 2*h, 2) if ks < 16 else vr(WB + ((ks & 1)*4+u)*4 + 2*h, 2))
                    r.append(I(f'ds_read_b64_tr_b16 {d}, {v} offset:{off}'))
            return r
        iss, chk = self.poll(sO2, 'h')
        for ks in range(8): o += rd_w(ks)
        o += iss
        for ks in range(8, 17): o += rd_w(ks)
        o += chk
        o += self.stamp(10)
        for ks in range(28):
            if ks % 4 == 0 and ks: e(f's_add_u32 {sO3}, {sO3}, 4096')
            e(f'buffer_load_dwordx4 {vr(HB+4*ks)}, {vL16}, {SWS}, {sO3} offen offset:{(ks%4)*1024} sc1')
        for hf in range(2): e(f'buffer_load_dwordx4 {vr(SF+8*hf+4)}, {vL16}, {SWS}, {sO4} offen offset:{hf*1024} sc1')
        for ks in range(28):
            mf = [MF(ACC+4*u, wf(ks, u), vr(HB+4*ks), '0' if ks == 0 else None) for u in range(4)]
            o += weave(mf, rd_w(ks+1) if 16 <= ks < 27 else [])
        o += self.stamp(11)
        for hf in range(2):
            b = SF + 8*hf
            for i in range(4):
                e(f'v_lshlrev_b32 v{b+2*i}, 16, v{b+4+i}') if i < 3 else e(f'v_lshlrev_b32 v{b+6}, 16, v{b+7}')
                e(f'v_and_b32 v{b+2*i+1}, 0xffff0000, v{b+4+i}')
        u = HB
        e(f's_mov_b32 s68, {hex(f2u(-LOG2E))}'); e(f's_mov_b32 s69, {hex(f2u(-LOG2E))}')
        for i in range(8): e(f'v_pk_mul_f32 {vr(u+2*i,2)}, {vr(ACC+2*i,2)}, s[68:69]')
        for i in range(16): e(f'v_exp_f32 v{u+i}, v{u+i}')
        for i in range(8): e(f'v_pk_add_f32 {vr(u+2*i,2)}, {vr(u+2*i,2)}, 1.0 op_sel_hi:[1,0]')
        for i in range(8): e(f'v_pk_mul_f32 {vr(ACC+2*i,2)}, {vr(ACC+2*i,2)}, {vr(SF+2*i,2)}')
        for i in range(16): e(f'v_rcp_f32 v{u+i}, v{u+i}')
        for i in range(8): e(f'v_pk_fma_f32 {vr(ACC+2*i,2)}, {vr(ACC+2*i,2)}, {vr(u+2*i,2)}, {vr(XF+2*i,2)}')
        for c in range(4):
            for i in range(2): e(f'v_cvt_pk_bf16_f32 v{u+2*c+i}, v{ACC+4*c+2*i}, v{ACC+4*c+2*i+1}')
            e(f'ds_write_b64 v{t+4+c}, {vr(u+2*c,2)}')
        for hf in range(2): e(f'ds_read_b128 {vr(u+8+4*hf)}, v{t+8} offset:{hf*1024}')
        for hf in range(2): e(f'buffer_store_dwordx4 {vr(u+8+4*hf)}, v{t+2+hf}, {SOUT}, {sO1} offen')
        o += self.stamp(12)
        return o

    def ln_all(self, role):
        o = []
        t = TMP
        o += self.addr_setup(role)
        o += self.issue_free()
        o += self.addr_setup2(role)
        if role == 'Z':
            o.append(I(f'v_and_b32 v{t+16}, 15, v0')); o.append(I(f'v_lshlrev_b32 v{t+16}, 1, v{t+16}'))
            o.append(I(f's_lshl_b32 s68, {sRB}, 7'))
            for rt in range(4): o.append(I(f'buffer_load_ushort v{vB+rt}, v{t+16}, {SBSP}, s68 offen offset:{rt*32}'))
        o.append(WaitLGKM0())
        o.append(I(f's_add_u32 {sTAG}, {sTAG}, {hex(TAGC)}'))
        if self.prof:
            o += [I(f's_lshl_b32 {sPB}, s2, 2'), I(f's_add_u32 {sPB}, {sPB}, {sW}'), I(f's_lshl_b32 {sPB}, {sPB}, 6'), I(f's_add_u32 {sPB}, {sPB}, {WS_PROF}')]
        o += self.stamp(0)
        o += self.ln_group(64, 32, t+5, PAGE, t+8, 3)
        o += self.stamp(1)
        o += self.ln_group(96, 32, t+6, PAGE, t+9, 3)
        o += self.ln_group(128, 16, t+7, 4096, t+10, 4)
        o += self.stamp(2)
        return o

    def rd_r(self):
        t = TMP
        o = [I(f'v_and_b32 v{t}, 15, v0'), I(f'v_lshlrev_b32 v{t}, 2, v{t}'), I(f'v_add_u32 v{t}, {RS}, v{t}')]
        o += [I(f'ds_read_b32 v{vR+T}, v{t} offset:{T*64}') for T in range(5)]
        return o

    def role_z(self):
        o = []
        e = lambda t: o.append(I(t))
        pa = [[self.pg_win(n, k, True) for k in range(2)] for n in range(8)]
        pc = [[self.pg_qkv(n, t) for t in range(3)] for n in range(8)]
        pb = [[self.pg_win(n, k, False) for k in range(2)] for n in range(8)]
        ps = [self.pg_sp(n) for n in range(32)]
        po = [self.pg_out(n) for n in range(14)]
        flat = lambda L: [x for y in L for x in y]
        self.ring_init(flat(pa) + flat(pc) + flat(pb) + ps + po, range(10, NRING))
        o += self.ln_all('Z')
        sa = [dict(pages=pa[n], rel=[n] + ([8, 9] if n == 7 else []), buf=n & 1,
                   reads=lambda b, n=n: self.rd_z(pa[n], b) + self.rd_xn(n), mf=lambda b, n=n: self.mf_z(n, b, ACCA, n == 0)) for n in range(8)]
        sc = [dict(pages=pc[n], buf=n & 1, reads=lambda b, n=n: self.rd_c(pc[n], b), mf=lambda b, n=n: self.mf_c(n, b, n == 0)) for n in range(8)]
        sb = [dict(pages=pb[n], buf=n & 1, reads=lambda b, n=n: self.rd_z(pb[n], b), mf=lambda b, n=n: self.mf_z(n, b, ACCB, n == 0)) for n in range(8)]
        look = lambda s: dict(s, mf=None)
        o += self.sync(pa[0], [])
        o += sa[0]['reads'](0) + self.rd_r()
        o += self.run_stages(sa + [look(sc[0])])
        o += self.stamp(3)
        o += self.gelu(ACCA)
        o += self.stats_publish()
        o += self.stamp(4)
        bg1, bg2 = BG(), BG()
        bg1.add(self.stats_recv_norm(130, 30))
        o += self.run_stages(sc + [look(sb[0])], [bg1])
        o += self.stamp(5)
        bg2.add([('delay', 1)] + self.attention(200))
        o += self.run_stages(sb, [bg1, bg2])
        o += self.flush(bg1) + self.flush(bg2)
        o += self.stamp(6)
        SPB, G = 64, 32
        vSP = 12
        t = TMP
        iss, chk = self.poll(sO4, 'z')
        o += iss
        e(f'v_and_b32 v{t+16}, 15, v0'); e(f'v_lshrrev_b32 v{t+17}, 4, v0'); e(f'v_lshrrev_b32 v{t+18}, 1, v{t+16}')
        e(f'v_xor_b32 v{t+17}, v{t+17}, v{t+18}'); e(f'v_lshlrev_b32 v{t+17}, 4, v{t+17}'); e(f'v_lshl_add_u32 v{vSP}, v{t+16}, 7, v{t+17}')
        e(f'v_xor_b32 v{vSP+1}, 64, v{vSP}')
        for w in (1, 2):
            for k in range(2): e(f'v_add_u32 v{vSP+2*w+k}, {w*0x10000}, v{vSP+k}')
        e(f's_lshl_b32 {sZP}, {sROT2}, 12')
        def rd_sp(n):
            r = []
            for ks2 in range(2):
                for rt in range(4):
                    v, off = self.win(vSP, 2, ks2, ps[n]['page']*PAGE + rt*2048)
                    r.append(I(f'ds_read_b128 {vr(SPB + (n&1)*32 + (ks2*4+rt)*4)}, {v} offset:{off}'))
            return r
        ZD = 12
        def ld_z(n):
            r = [I(f's_add_u32 s68, {sZP}, {sZB}')]
            for f in range(4): r.append(I(f'buffer_load_dwordx4 {ar(((n & 15)*4 + f)*4)}, {vL16}, {SWS}, s68 offen offset:{f*1024} sc1'))
            r += [I(f's_add_u32 {sZP}, {sZP}, 4096'), I(f's_and_b32 {sZP}, {sZP}, {0x1ffff}')]
            return r
        def mf_p2(n):
            r = []
            for ks2 in range(2):
                for c in range(2):
                    for rt in range(4):
                        r.append(MF(G + (rt*2+c)*4, ar(((n & 15)*4 + ks2*2 + c)*4), vr(SPB + (n&1)*32 + (ks2*4+rt)*4), '0' if n == 0 and ks2 == 0 else None))
            return r
        GRP = 4
        o += self.sync(ps[0:GRP+1], [])
        o += rd_sp(0)
        o += chk
        o += self.stamp(7)
        for n in range(ZD): o += ld_z(n)
        bg3 = BG(); bg3.add(self.gelu(ACCB, npk=False))
        done = []
        for n in range(32):
            high = []
            if n % GRP == 0 and n:
                o += self.sync(ps[n+1:n+GRP+1], done); done = []
            if n + 1 < 32: high += rd_sp(n+1)
            done.append(ps[n])
            if n + ZD < 32: high += ld_z(n + ZD)
            high += self.issue_free(maxn=1 if n + ZD < 32 else 2)
            o += weave(mf_p2(n), high, [bg3])
        self.pending_release = done
        o += self.flush(bg3)
        o += self.stamp(8)
        for rt in range(4):
            e(f'v_lshlrev_b32 v{t+2*rt+1}, 16, v{vB+rt}'); e(f'v_mov_b32 v{t+2*rt}, v{vR+1+rt}')
            e(f'v_mul_f32 v{t+2*rt+1}, v{t+2*rt+1}, v{vR+1+rt}')
        e(f's_lshl_b32 s68, {sCB}, 2'); e(f's_add_u32 s68, s68, {sW}')
        e(f's_mul_i32 s69, {sRB}, {4*28}'); e('s_add_u32 s69, s69, s68'); e('s_lshl_b32 s69, s69, 10'); e(f's_add_u32 s69, s69, {WS_H}')
        e(f's_lshl_b32 s70, {sRB}, 5'); e('s_add_u32 s70, s70, s68'); e('s_lshl_b32 s70, s70, 2'); e(f's_add_u32 s70, s70, {WS_FLAGH}')
        tok = Tok()
        for rt in range(4):
            c = vr(t + 2*rt, 2)
            g, z = G + rt*8, ACCB + rt*8
            for i in range(4): e(f'v_pk_fma_f32 {vr(g+2*i,2)}, {vr(g+2*i,2)}, {c}, {c} op_sel:[0,0,1] op_sel_hi:[1,0,1]')
            for i in range(4): e(f'v_pk_mul_f32 {vr(g+2*i,2)}, {vr(g+2*i,2)}, {vr(z+2*i,2)}')
            for i in range(4): e(f'v_cvt_pk_bf16_f32 v{g+i}, v{g+2*i}, v{g+2*i+1}')
            o.append(I(f'buffer_store_dwordx4 {vr(g)}, {vL16}, {SWS}, s69 offen sc1', tok if rt == 3 else None))
            e(f's_add_u32 s69, s69, {28*1024}')
        e(f'v_mov_b32 v{t+8}, {sTAG}'); e(f'v_mov_b32 v{t+9}, 0')
        o.append(WaitVM(tok))
        e(f'buffer_store_dword v{t+8}, v{t+9}, {SWS}, s70 offen sc1')
        o += self.stamp(9)
        o += self.p3(po)
        e('s_cmp_lg_u32 s2, 0'); e('s_cbranch_scc1 L_end')
        e(f'v_mov_b32 v{t+8}, {sTAG}'); e(f'v_mov_b32 v{t+9}, 0')
        e(f'buffer_store_dword v{t+8}, v{t+9}, {SWS}, 0 offen')
        e('s_endpgm')
        return o

    def role_s(self):
        o = []
        e = lambda t: o.append(I(t))
        t = TMP
        pc = [[self.pg_qkv(n, tt) for tt in range(3)] for n in range(8)]
        pw = [[[self.pg_wo(p, n, k) for k in range(2)] for n in range(8)] for p in range(4)]
        po = [self.pg_out(n) for n in range(14)]
        flat = lambda L: [x for y in L for x in y]
        self.ring_init(flat(pc) + flat(flat(pw)) + po, range(10, NRING))
        o += self.ln_all('S')
        e(f's_lshl_b32 s68, {sRB}, 13'); e(f's_add_u32 s68, s68, {WS_STATS + 7*1024}')
        e(f'v_mov_b32 v{t+12}, 0'); e(f'v_mov_b32 v{t+13}, 0'); e(f'v_mov_b32 v{t+14}, {sTAG}'); e(f'v_mov_b32 v{t+15}, {sTAG}')
        e(f'buffer_store_dwordx4 {vr(t+12)}, {vL16}, {SWS}, s68 offen sc1')
        sc = [dict(pages=pc[n], rel=([8, 9] if n == 7 else []), buf=n & 1,
                   reads=lambda b, n=n: self.rd_c(pc[n], b) + self.rd_xn(n), mf=lambda b, n=n: self.mf_c(n, b, n == 0)) for n in range(8)]
        o += self.sync(pc[0], [])
        o += sc[0]['reads'](0) + self.rd_r()
        o += self.run_stages(sc)
        o += self.stamp(5)
        bg = BG(); bg.add(self.attention(200))
        o += self.flush(bg)
        o += self.stamp(6)
        e(f's_lshl_b32 s68, {sRB}, 7'); e(f's_add_u32 {sO1}, s68, {WS_FLAGO}')
        iss, chk = self.poll(sO1, 'o')
        o += iss + chk
        o += self.stamp(7)
        e(f's_lshl_b32 s68, {sRB}, 16'); e(f's_add_u32 s68, s68, {sM0B}'); e(f's_add_u32 s68, s68, {WS_O}')
        otok = []
        for p in range(8):
            e(f's_lshr_b32 s69, {sKIN[p]}, 3'); e(f's_add_u32 s69, s69, s68')
            e(f's_add_u32 m0, {sM0B}, {p*PAGE}')
            e(f'buffer_load_dwordx4 {vL16}, {SWS}, s69 offen sc1 lds')
            tk = Tok(); otok.append(dict(tok=tk, page=p))
            o.append(I(f'buffer_load_dwordx4 {vL16}, {SWS}, s69 offen offset:1024 sc1 lds', tk))
        e(f'v_lshlrev_b32 v{vXR[0]}, 3, v0')
        def rd_o(n):
            r = []
            for ks2 in range(2):
                for rt in range(4):
                    for hh in range(2):
                        r.append(I(f'ds_read_b64 {ar(self.xa(n, ks2, rt) + 2*hh, 2)}, v{vXR[0]} offset:{n*PAGE + (ks2*2+hh)*2048 + rt*512}'))
            return r
        stages = []
        accs = [32, 64, 32, 64]
        e(f's_lshl_b32 s68, {sRB}, 16'); e(f's_lshr_b32 s69, {sW}, 1'); e('s_lshl_b32 s69, s69, 13'); e('s_add_u32 s68, s68, s69')
        e(f's_and_b32 s69, {sW}, 1'); e('s_lshl_b32 s69, s69, 10'); e('s_add_u32 s68, s68, s69'); e(f's_add_u32 {sO2}, s68, {WS_S}')
        bg = BG()
        stok = Tok()
        def epi(p):
            r = [('delay', 1)]
            for rt in range(4):
                a = accs[p] + rt*8
                for i in range(4): r.append(I(f'v_cvt_pk_bf16_f32 v{a+i}, v{a+2*i}, v{a+2*i+1}'))
                r.append(I(f's_add_u32 {sO3}, {sO2}, {p*16384 + rt*2048}'))
                r.append(I(f'buffer_store_dwordx4 {vr(a)}, {vL16}, {SWS}, {sO3} offen sc1', stok if (p, rt) == (3, 3) else None))
            return r
        allst = []
        for p in range(4):
            for n in range(8):
                allst.append(dict(pages=pw[p][n] + ([otok[n]] if p == 0 else []), buf=n & 1,
                                  reads=lambda b, p=p, n=n: self.rd_z(pw[p][n], b) + (rd_o(n) if p == 0 else []),
                                  mf=lambda b, p=p, n=n: self.mf_z(n, b, accs[p], n == 0)))
        o += self.sync(allst[0]['pages'], [])
        o += allst[0]['reads'](0)
        look = lambda s: dict(s, mf=None)
        for p in range(4):
            seg = allst[p*8:p*8+8] + ([look(allst[p*8+8])] if p < 3 else [])
            o += self.run_stages(seg, [bg])
            o += self.flush(bg)
            bg.add(epi(p))
        o += self.flush(bg)
        o += self.stamp(8)
        e(f's_lshl_b32 s70, {sRB}, 5'); e(f's_add_u32 s70, s70, {sW}'); e('s_lshl_b32 s70, s70, 2'); e(f's_add_u32 s70, s70, {WS_FLAGH + 28*4}')
        e(f'v_mov_b32 v{t+8}, {sTAG}'); e(f'v_mov_b32 v{t+9}, 0')
        o.append(WaitVM(stok))
        e(f'buffer_store_dword v{t+8}, v{t+9}, {SWS}, s70 offen sc1')
        o += self.stamp(9)
        self.pending_release = []
        o += self.p3(po)
        e('s_endpgm')
        return o

    def build(self):
        pro = self.prologue() + self.x_loads()
        br = [I(f's_cmp_eq_u32 {sCB}, 7'), I('s_cbranch_scc1 L_roleS')]
        z = self.role_z()
        s = self.role_s()
        st1, st2 = {}, {}
        tz = finalize(pro + br + z, st1)
        ts_all = finalize(pro + br + [I('L_roleS:')] + s, st2)
        ts = ts_all[ts_all.index('L_roleS:'):]
        print('role Z', st1, 'role S', st2, file=sys.stderr)
        hdr = open('cdna_kernels/' + NAME + '.s.ref').read().split('; Override launch')[0]
        L = [hdr.rstrip(), '; @launch grid=(256,1,1) block=(256,1,1) lds=163840',
             '.amdgcn_target "amdgcn-amd-amdhsa--gfx950"', '.text', f'.globl {NAME}_kernel', '.p2align 8',
             f'.type {NAME}_kernel,@function', f'{NAME}_kernel:']
        L += tz + ts + self.slow + ['L_end:', 's_endpgm']
        L += [f'.fill (65536 + 256 - (. - {NAME}_kernel)) / 4, 4, 0xBF810000']
        L += ['.section .rodata,"a"', '.p2align 6', f'.amdhsa_kernel {NAME}_kernel', '  .amdhsa_next_free_vgpr 512',
              '  .amdhsa_next_free_sgpr 102', '  .amdhsa_accum_offset 256', '  .amdhsa_group_segment_fixed_size 0',
              '  .amdhsa_kernarg_size 88', '  .amdhsa_user_sgpr_count 2', '  .amdhsa_user_sgpr_kernarg_segment_ptr 1',
              '  .amdhsa_system_sgpr_workgroup_id_x 1', '.end_amdhsa_kernel']
        return '\n'.join(L) + '\n'

if __name__ == '__main__':
    prof = '--prof' in sys.argv
    out = [a for a in sys.argv[1:] if not a.startswith('--')]
    src = Gen(prof).build()
    open(out[0] if out else f'cdna_kernels/{NAME}.s', 'w').write(src)
```

```python
import sys, math, struct
from asmfw import *

NAME = "recurrent_scan__sliding_local_dilated__mixer_gmlp__prompt"
PAGE = 8192
WS_FLAGZ, WS_FLAGO, WS_FLAGH = 0x1000, 0x2000, 0x3000
WS_STATS = 0x10000
WS_Z2N, WS_O, WS_H, WS_S = 0x100000, 0x500000, 0x700000, 0xB00000
WS_PROF = 0x1000000
TAGC = 0x9E3779B9
SPIN = 30000
PG_TR = 18
SCR = 19 * PAGE
RS, STA, STB = SCR, SCR + 512, SCR + 512 + 2048
NRING = 18

def f2u(x): return struct.unpack('<I', struct.pack('<f', x))[0]
LOG2E = math.log2(math.e)
GC0 = -2.0 * math.sqrt(2.0 / math.pi) * LOG2E
GC1 = GC0 * 0.044715

SX, SQKV, SWIN, SWSP, SWOUT, SWS, SOUT, SBSP, SWO = [f's[{i}:{i+3}]' for i in range(4, 40, 4)]
sW, sRB, sCB, sROT, sROT2, sTAG, sM0B = 's40', 's41', 's42', 's43', 's44', 's45', 's46'
sKIN = [f's{48+i}' for i in range(8)]
sKQ = [f's{56+i}' for i in range(8)]
sONES, sLO, sHI = 's64', 's65', 's66'
sOFF = 's67'
sT = [f's{68+i}' for i in range(8)]
sZP = 's76'
sZB = 's77'
sSPP = 's78'
sCNT = 's79'
mP, mA, mB = 's[80:81]', 's[82:83]', 's[84:85]'
sO1, sO2, sO3, sO4 = 's86', 's87', 's88', 's89'
sPT = 's[90:91]'
sPB = 's92'
sBIAS = 's93'

vL, vL16 = 'v0', 'v1'
vDWIN, vDQKV, vDSP, vDOUT = (2, 3), (4, 5), (6, 7), (8, 9)
vXR = (10, 11)
vTRZ = 12
vTRC = 18
vR = 21
vB = 26
vXH = (30, 31)
ACCA = 32
QA, KA, VA = 64, 80, 100
FB = 120
HALO = 168
ACCB = 168
TMP = 232

def vr(b, n=4): return f'v[{b}:{b+n-1}]'
def ar(b, n=4): return f'a[{b}:{b+n-1}]'
def MF(d, a, b, c=None, k=32):
    return I(f'v_mfma_f32_16x16x{k}_bf16 {vr(d)}, {a}, {b}, {vr(d) if c is None else c}')

OPT = set(a[2:] for a in sys.argv if a.startswith('--'))
class Gen:
    def __init__(self, prof=False):
        self.prof = prof
        self.slow = []
        self.nlab = 0
        self.nprof = 0

    def label(self, s):
        self.nlab += 1
        return f'L_{s}_{self.nlab}'

    def stamp(self, idx):
        if not self.prof: return []
        return [I(f's_memrealtime {sPT}'), I(f's_memtime s[94:95]'), WaitLGKM0(), I(f'v_mov_b32 v255, s90'), I(f'v_mov_b32 v254, 0'),
                I(f'buffer_store_dword v255, v254, {SWS}, {sPB} offen offset:{idx*4}'), I(f'v_mov_b32 v255, s94'),
                I(f'buffer_store_dword v255, v254, {SWS}, {sPB} offen offset:{64+idx*4}')]

    def ring_init(self, loads, free):
        self.loads = loads
        self.nxt = 0
        self.free = list(free)
        for l in loads: l['page'] = None; l['tok'] = None
    def dma_page(self, l):
        srd, vo, soff, flags = l['srd'], l['vo'], l['soff'], l.get('flags', 'nt')
        l['tok'] = Tok()
        out = [I(f's_add_u32 m0, {sM0B}, {l["page"]*PAGE}')] + list(soff)
        out.append(I(f'buffer_load_dwordx4 v{vo[0]}, {srd}, {sOFF} offen {flags} lds'))
        out.append(I(f'buffer_load_dwordx4 v{vo[1]}, {srd}, {sOFF} offen offset:1024 {flags} lds', l['tok']))
        return out
    def issue_free(self, maxn=99, upto=None):
        out = []
        n = 0
        while self.free and self.nxt < len(self.loads) and n < maxn and (upto is None or self.nxt < upto):
            l = self.loads[self.nxt]
            if l.get('gate') and not l['gate'](): break
            self.nxt += 1
            l['page'] = self.free.pop(0)
            out += self.dma_page(l); n += 1
        return out
    def sync(self, need, release):
        out = []
        for l in need:
            assert l['tok'] is not None, 'page needed but never issued'
            out.append(WaitVM(l['tok']))
        out.append(WaitLGKM0())
        out.append(I('s_barrier'))
        for p in release: self.free.append(p if isinstance(p, int) else p['page'])
        return out

    def win(self, base, nvar, var, addr):
        w = addr >> 16
        return f'v{base + w*nvar + var}', addr & 0xffff

    def pg_win(self, n, ks2, z2):
        c = ks2 * 32 * 3584 + (1792 if z2 else 0)
        return dict(srd=SWIN, vo=vDWIN, soff=[I(f's_add_u32 {sOFF}, {sKIN[n]}, {c}')])
    def pg_qkv(self, n, t):
        return dict(srd=SQKV, vo=vDQKV, soff=[I(f's_add_u32 {sOFF}, {sKQ[n]}, {t*1024}')])
    def pg_sp(self, n):
        return dict(srd=SWSP, vo=vDSP, soff=[I(f's_add_u32 {sOFF}, {sSPP}, {n*128}'), I(f's_and_b32 {sOFF}, {sOFF}, 4095')])
    def pg_out(self, n):
        return dict(srd=SWOUT, vo=vDOUT, soff=[I(f's_mov_b32 {sOFF}, {n*64*1024}')])
    def pg_wo(self, p, n, ks2):
        return dict(srd=SWO, vo=vDWIN, soff=[I(f's_add_u32 {sOFF}, {sKIN[n]}, {ks2*32*1024 + p*256}')])

    def prologue(self):
        o = []
        e = lambda t: o.append(I(t))
        e('s_cmp_ge_u32 s2, 256'); e('s_cbranch_scc1 L_end')
        for srd, off in ((4, 0), (8, 8), (12, 32), (24, 80), (16, 40), (20, 56), (28, 64), (32, 48), (36, 16)):
            e(f's_load_dwordx2 s[{srd}:{srd+1}], s[0:1], {off}')
        e('s_getpc_b64 s[68:69]')
        e('v_lshrrev_b32 v1, 6, v0')
        e('s_lshr_b32 s70, s2, 3')
        e(f'v_readfirstlane_b32 {sW}, v1')
        e('v_lshrrev_b32 v2, 4, v0'); e('s_lshl_b32 s71, s70, 4'); e('v_add_u32 v2, s71, v2'); e('v_lshlrev_b32 v2, 7, v2')
        e('global_load_dword v253, v2, s[68:69]')
        e('v_and_b32 v0, 63, v0')
        e('s_and_b32 s71, s2, 7')
        e('s_lshr_b32 s72, s71, 1'); e('s_lshl_b32 s72, s72, 3'); e('s_lshr_b32 s73, s70, 2'); e(f's_add_u32 {sRB}, s72, s73')
        e('s_and_b32 s72, s71, 1'); e('s_lshl_b32 s72, s72, 2'); e('s_and_b32 s73, s70, 3'); e(f's_add_u32 {sCB}, s72, s73')
        e(f's_lshl_b32 s72, {sCB}, 1'); e(f's_add_u32 s72, s72, {sRB}'); e(f's_and_b32 {sROT}, s72, 7')
        e(f's_lshl_b32 {sROT2}, {sROT}, 2')
        e(f's_lshl_b32 {sM0B}, {sW}, 11')
        for srd, nb in ((4, 2048*1024), (8, 512*3072), (12, 512*3584), (16, 2048*4096), (20, 896*1024), (24, 0x10000000), (28, 2048*1024), (32, 4096), (36, 512*1024)):
            e(f's_mov_b32 s{srd+2}, {nb}'); e(f's_mov_b32 s{srd+3}, 0x20000')
        e(f's_mov_b32 {sONES}, 0x3f803f80'); e(f's_mov_b32 {sLO}, 0x3f80'); e(f's_mov_b32 {sHI}, 0x3f800000')
        e(f'v_lshlrev_b32 {vL16}, 4, v0')
        return o

    def x_loads(self):
        o = []
        e = lambda t: o.append(I(t))
        t = TMP
        e(f'v_and_b32 v{t}, 7, v0'); e(f'v_lshrrev_b32 v{t+1}, 3, v0')
        e(f's_and_b32 s68, {sCB}, 1'); e('s_lshl_b32 s68, s68, 3')
        e(f'v_add_u32 v{t+2}, s68, v{t+1}')
        e(f's_lshl_b32 s69, {sRB}, 6'); e(f's_lshl_b32 s70, {sW}, 4'); e('s_add_u32 s70, s70, s69')
        e(f'v_add_u32 v{t+3}, s70, v{t+2}'); e(f'v_lshlrev_b32 v{t+3}, 10, v{t+3}')
        e(f'v_lshl_add_u32 v{t+3}, v{t}, 4, v{t+3}')
        e(f'v_xor_b32 v{t+4}, 0x2000, v{t+3}')
        o.append(WaitLGKM0())
        e(f's_load_dword {sTAG}, s[24:25], 0')
        e(f's_lshl_b32 s71, {sROT}, 7')
        for G in range(2):
            for n in range(8):
                e(f's_add_u32 s72, s71, {n*128}'); e('s_and_b32 s72, s72, 1023')
                e(f'buffer_load_dwordx4 {vr(64 + G*32 + n*4)}, v{t+3+G}, {SX}, s72 offen nt')
        e(f'v_lshrrev_b32 v{t+12}, 4, v0'); e(f's_lshl_b32 s70, {sW}, 2'); e(f'v_add_u32 v{t+12}, s70, v{t+12}')
        e('s_sub_u32 s69, s69, 16'); e('s_max_i32 s69, s69, 0')
        e(f'v_add_u32 v{t+13}, s69, v{t+12}'); e(f'v_lshlrev_b32 v{t+13}, 10, v{t+13}')
        e(f'v_and_b32 v{t+14}, 15, v0'); e(f'v_lshlrev_b32 v{t+14}, 4, v{t+14}'); e(f'v_add_u32 v{t+14}, s71, v{t+14}')
        e('s_movk_i32 s72, 1023')
        for n in range(4):
            e(f'v_add_u32 v{t+8+n}, {n*256}, v{t+14}')
            e(f'v_and_or_b32 v{t+8+n}, v{t+8+n}, s72, v{t+13}')
            e(f'buffer_load_dwordx4 {vr(128 + n*4)}, v{t+8+n}, {SX}, 0 offen nt')
        return o

    def addr_setup(self, role):
        o = []
        e = lambda t: o.append(I(t))
        t = TMP
        a, b, c, d = t+16, t+17, t+18, t+19
        e(f'v_and_b32 v{a}, 6, v{t+1}'); e(f'v_xor_b32 v{a}, v{a}, v{t}'); e(f'v_lshlrev_b32 v{a}, 4, v{a}')
        e(f'v_lshrrev_b32 v{b}, 5, v0'); e(f'v_lshlrev_b32 v{b}, 3, v{b}'); e(f'v_and_b32 v{c}, 3, v{t+1}'); e(f'v_add_u32 v{b}, v{b}, v{c}')
        e(f's_and_b32 s68, {sW}, 1'); e(f's_lshr_b32 s69, {sW}, 1')
        if role == 'Z':
            e('s_lshl_b32 s70, s68, 2'); e(f'v_add_u32 v{c}, s70, v{b}'); e(f'v_mul_u32_u24 v{c}, 3584, v{c}')
            e(f's_lshl_b32 s70, {sCB}, 8'); e('s_lshl_b32 s72, s69, 7'); e('s_add_u32 s70, s70, s72')
            e(f'v_add3_u32 v{vDWIN[0]}, v{c}, v{a}, s70'); e(f'v_add_u32 v{vDWIN[1]}, {16*3584-1024}, v{vDWIN[0]}')
        else:
            e('s_lshl_b32 s70, s68, 4'); e(f'v_add_u32 v{c}, s70, v{t+1}'); e(f'v_lshlrev_b32 v{c}, 10, v{c}')
            e('s_lshl_b32 s70, s69, 7')
            e(f'v_add3_u32 v{vDWIN[0]}, v{c}, v{a}, s70'); e(f'v_add_u32 v{vDWIN[1]}, {8*1024-1024}, v{vDWIN[0]}')
        e('s_lshl_b32 s70, s68, 2'); e('s_lshl_b32 s72, s69, 5'); e('s_add_u32 s70, s70, s72')
        e(f'v_add_u32 v{c}, s70, v{b}'); e(f'v_mul_u32_u24 v{c}, 3072, v{c}')
        e(f's_lshl_b32 s70, {sCB}, 7')
        e(f'v_add3_u32 v{vDQKV[0]}, v{c}, v{a}, s70'); e(f'v_add_u32 v{vDQKV[1]}, {16*3072-1024}, v{vDQKV[0]}')
        for n in range(8):
            e(f's_add_u32 s72, {sROT}, {n}'); e('s_and_b32 s72, s72, 7')
            e(f's_mul_i32 {sKIN[n]}, s72, {64*3584 if role == "Z" else 64*1024}'); e(f's_mul_i32 {sKQ[n]}, s72, {64*3072}')
        return o

    def addr_setup2(self, role):
        o = []
        e = lambda t: o.append(I(t))
        t = TMP
        a, b, c, d = t+16, t+17, t+18, t+19
        e(f's_lshl_b32 s72, {sW}, 4'); e(f'v_add_u32 v{c}, s72, v{t+1}'); e(f'v_lshlrev_b32 v{d}, 10, v{c}')
        e(f's_lshl_b32 s70, {sCB}, 7')
        e(f'v_add3_u32 v{vDOUT[0]}, v{d}, v{a}, s70'); e(f'v_add_u32 v{vDOUT[1]}, {8*1024-1024}, v{vDOUT[0]}')
        e(f's_lshl_b32 s70, {sRB}, 6'); e(f'v_add_u32 v{c}, s70, v{c}'); e(f'v_lshlrev_b32 v{c}, 12, v{c}')
        e(f'v_lshrrev_b32 v{d}, 4, v0'); e(f'v_xor_b32 v{d}, v{d}, v{t}')
        e(f'v_lshl_add_u32 v{vDSP[0]}, v{d}, 4, v{c}')
        e(f'v_xor_b32 v{vDSP[1]}, 64, v{vDSP[0]}'); e(f'v_add_u32 v{vDSP[1]}, {8*4096-1024}, v{vDSP[1]}')
        e(f's_lshl_b32 {sSPP}, {sROT2}, 7')
        e(f's_cmp_eq_u32 {sRB}, 0'); e(f's_cselect_b32 {sBIAS}, {hex(f2u(-1e30))}, 0')
        e(f'v_lshrrev_b32 v{c}, 2, v{t}'); e(f'v_lshlrev_b32 v{c}, 10, v{c}')
        e(f'v_and_b32 v{d}, 3, v{t}'); e(f'v_lshl_add_u32 v{c}, v{d}, 8, v{c}')
        e(f'v_xor_b32 v{d}, v{t+2}, v{t}'); e(f'v_lshl_add_u32 v{t+5}, v{d}, 4, v{c}'); e(f'v_add_u32 v{t+5}, {sM0B}, v{t+5}')
        e(f'v_xor_b32 v{t+6}, 128, v{t+5}')
        e(f'v_xor_b32 v{d}, v{t+12}, v{t}'); e(f'v_lshl_add_u32 v{t+7}, v{d}, 4, v{c}')
        e(f'v_and_b32 v{d}, 1, v{t+1}'); e(f'v_lshl_add_u32 v{t+7}, v{d}, 11, v{t+7}'); e(f'v_add_u32 v{t+7}, 0x10000, v{t+7}')
        e(f'v_and_b32 v{c}, 15, v0'); e(f'v_lshrrev_b32 v{d}, 4, v0')
        e(f'v_xor_b32 v{b}, v{c}, v{d}'); e(f'v_lshlrev_b32 v{b}, 4, v{b}'); e(f'v_lshl_add_u32 v{vXR[0]}, v{d}, 8, v{b}')
        e(f'v_xor_b32 v{vXR[1]}, {64 + 1024}, v{vXR[0]}')
        e(f'v_add_u32 v{vXH[0]}, 0x10000, v{vXR[0]}'); e(f'v_add_u32 v{vXH[1]}, 0x10000, v{vXR[1]}')
        e(f'v_lshrrev_b32 v{b}, 2, v0'); e(f'v_lshlrev_b32 v{b}, 7, v{b}')
        e(f'v_and_b32 v{c}, 3, v0'); e(f'v_lshl_add_u32 v{b}, v{c}, 3, v{b}')
        e(f'v_and_b32 v{c}, 3, v{t+1}'); e(f'v_lshl_add_u32 v{b}, v{c}, 5, v{b}')
        e(f's_lshl_b32 s70, {sW}, 5'); e(f'v_xor_b32 v{vTRC}, s70, v{b}')
        e(f's_and_b32 s70, {sW}, 1'); e('s_lshl_b32 s70, s70, 6'); e(f's_lshr_b32 s72, {sW}, 1'); e('s_lshl_b32 s72, s72, 12'); e('s_or_b32 s70, s70, s72')
        e(f'v_xor_b32 v{vTRZ}, s70, v{b}'); e(f'v_xor_b32 v{vTRZ+1}, 32, v{vTRZ}')
        for w in (1, 2):
            e(f'v_add_u32 v{vTRC+w}, {w*0x10000}, v{vTRC}')
            for cc in range(2): e(f'v_add_u32 v{vTRZ+2*w+cc}, {w*0x10000}, v{vTRZ+cc}')
        e(f's_lshl_b32 s70, {sW}, 6'); e(f's_add_u32 s70, s70, {RS + 64}')
        e(f'v_lshl_add_u32 v{t+8}, v{t+2}, 2, s70'); e(f'v_xor_b32 v{t+9}, 32, v{t+8}')
        e(f's_mov_b32 s70, {RS}'); e(f'v_lshl_add_u32 v{t+10}, v{t+12}, 2, s70')
        return o

    def ln_group(self, X, nreg, ldsaddr, ldsstep, rsaddr, nsteps):
        o = []
        e = lambda t: o.append(I(t))
        s, q, lo = TMP+20, TMP+21, 144
        dpp = ['quad_perm:[1,0,3,2]', 'quad_perm:[2,3,0,1]', 'row_half_mirror', 'row_mirror'][:nsteps]
        e(f'v_mov_b32 v{s}, 0'); e(f'v_mov_b32 v{q}, 0')
        for i in range(nreg): e(f'v_dot2c_f32_bf16 v{s}, {sONES}, v{X+i}')
        for m in dpp: e(f'v_add_f32_dpp v{s}, v{s}, v{s} {m} row_mask:0xf bank_mask:0xf')
        e(f'v_mul_f32 v{s}, {hex(f2u(-1.0/512))}, v{s}')
        for n in range(nreg // 4):
            for i in range(4):
                e(f'v_dot2_f32_bf16 v{lo+2*i}, v{X+4*n+i}, {sLO}, v{s}')
                e(f'v_dot2_f32_bf16 v{lo+2*i+1}, v{X+4*n+i}, {sHI}, v{s}')
            for i in range(4):
                e(f'v_cvt_pk_bf16_f32 v{X+4*n+i}, v{lo+2*i}, v{lo+2*i+1}')
            e(f'ds_write_b128 v{ldsaddr}, {vr(X+4*n)} offset:{n*ldsstep}')
        for i in range(nreg): e(f'v_dot2c_f32_bf16 v{q}, v{X+i}, v{X+i}')
        for m in dpp: e(f'v_add_f32_dpp v{q}, v{q}, v{q} {m} row_mask:0xf bank_mask:0xf')
        e(f'v_mov_b32 v{s}, {hex(f2u(1e-5))}')
        e(f'v_fmac_f32 v{s}, {hex(f2u(1.0/512))}, v{q}')
        e(f'v_rsq_f32 v{s}, v{s}')
        e(f'ds_write_b32 v{rsaddr}, v{s}')
        return o

    def xa(self, p, ks2, rt): return (p*8 + ks2*4 + rt) * 4
    def rd_xn(self, p, halo=True):
        o = []
        for ks2 in range(2):
            for rt in range(4):
                o.append(I(f'ds_read_b128 {ar(self.xa(p, ks2, rt))}, v{vXR[ks2]} offset:{p*PAGE + rt*2048}'))
            if halo:
                o.append(I(f'ds_read_b128 {vr(HALO + (p*2+ks2)*4)}, v{vXH[ks2]} offset:{p*2048}'))
        return o
    def rd_z(self, pages, buf):
        o = []
        for ks2 in range(2):
            for c in range(2):
                for h in range(2):
                    v, off = self.win(vTRZ, 2, c, pages[ks2]['page']*PAGE + h*2048)
                    o.append(I(f'ds_read_b64_tr_b16 {vr(FB + buf*24 + (ks2*2+c)*4 + 2*h, 2)}, {v} offset:{off}'))
        return o
    def mf_z(self, p, buf, acc, first):
        o = []
        for ks2 in range(2):
            for c in range(2):
                for rt in range(4):
                    o.append(MF(acc + (rt*2+c)*4, vr(FB + buf*24 + (ks2*2+c)*4), ar(self.xa(p, ks2, rt)), '0' if first and ks2 == 0 else None))
        return o
    def rd_c(self, pages, buf):
        o = []
        for ks2 in range(2):
            for t in range(3):
                for h in range(2):
                    v, off = self.win(vTRC, 1, 0, pages[t]['page']*PAGE + ks2*4096 + h*2048)
                    o.append(I(f'ds_read_b64_tr_b16 {vr(FB + buf*24 + (ks2*3+t)*4 + 2*h, 2)}, {v} offset:{off}'))
        return o
    def mf_c(self, p, buf, first):
        o = []
        for ks2 in range(2):
            z = '0' if first and ks2 == 0 else None
            f = lambda t: vr(FB + buf*24 + (ks2*3+t)*4)
            x = lambda T: vr(HALO + (p*2+ks2)*4) if T == 0 else ar(self.xa(p, ks2, T-1))
            for rt in range(4): o.append(MF(QA + rt*4, f(0), x(rt+1), z))
            for T in range(5): o.append(MF(KA + T*4, f(1), x(T), z))
            for T in range(5): o.append(MF(VA + T*4, x(T), f(2), z))
        return o

    def run_stages(self, stages, bgs=(), first_reads_done=False):
        o = []
        for i, st in enumerate(stages):
            nx = stages[i+1] if i + 1 < len(stages) else None
            rel = st['pages'] + st.get('rel', [])
            if st.get('mf') is None:
                break
            o += self.sync(nx['pages'] if nx else [], rel)
            high = (nx['reads'](nx['buf']) if nx else []) + self.issue_free()
            o += weave(st['mf'](st['buf']), high, bgs)
            o += st.get('post', [])
        return o

    def gelu(self, acc, npk=True):
        o = []
        e = lambda t: o.append(I(t))
        cc = TMP
        t = TMP + 8
        for rt in range(4):
            r = vR + 1 + rt
            e(f'v_mul_f32 v{cc+2*rt+1}, {hex(f2u(GC0))}, v{r}')
            e(f'v_mul_f32 v{cc+2*rt}, v{r}, v{r}')
            e(f'v_mul_f32 v{cc+2*rt}, v{cc+2*rt}, v{r}')
            e(f'v_mul_f32 v{cc+2*rt}, {hex(f2u(GC1))}, v{cc+2*rt}')
        for rt in range(4):
            a = acc + rt*8
            c = vr(cc + 2*rt, 2)
            if npk:
                for i in range(4): e(f'v_pk_mul_f32 {vr(t+2*i,2)}, {vr(a+2*i,2)}, {vr(a+2*i,2)}')
                for i in range(4): e(f'v_pk_fma_f32 {vr(t+2*i,2)}, {vr(t+2*i,2)}, {c}, {c} op_sel:[0,0,1] op_sel_hi:[1,0,1]')
                for i in range(4): e(f'v_pk_mul_f32 {vr(t+2*i,2)}, {vr(t+2*i,2)}, {vr(a+2*i,2)}')
                for i in range(8): e(f'v_exp_f32 v{t+i}, v{t+i}')
                for i in range(4): e(f'v_pk_add_f32 {vr(t+2*i,2)}, {vr(t+2*i,2)}, 1.0 op_sel_hi:[1,0]')
                for i in range(8): e(f'v_rcp_f32 v{t+i}, v{t+i}')
                for i in range(4): e(f'v_pk_mul_f32 {vr(a+2*i,2)}, {vr(a+2*i,2)}, {vr(t+2*i,2)}')
            else:
                for i in range(8): e(f'v_mul_f32 v{t+i}, v{a+i}, v{a+i}')
                for i in range(8): e(f'v_fma_f32 v{t+i}, v{t+i}, v{cc+2*rt}, v{cc+2*rt+1}')
                for i in range(8): e(f'v_mul_f32 v{t+i}, v{t+i}, v{a+i}')
                for i in range(8): e(f'v_exp_f32 v{t+i}, v{t+i}')
                for i in range(8): e(f'v_add_f32 v{t+i}, 1.0, v{t+i}')
                for i in range(8): e(f'v_rcp_f32 v{t+i}, v{t+i}')
                for i in range(8): e(f'v_mul_f32 v{a+i}, v{a+i}, v{t+i}')
        return o

    def allred4(self, regs, tmps, op):
        o = []
        for sw in ('v_permlane16_swap_b32', 'v_permlane32_swap_b32'):
            for r, t in zip(regs, tmps): o.append(I(f'v_mov_b32 v{t}, v{r}'))
            for r, t in zip(regs, tmps): o.append(I(f'{sw} v{r}, v{t}'))
            for r, t in zip(regs, tmps): o.append(I(f'{op} v{r}, v{r}, v{t}'))
        return o

    def stats_publish(self):
        o = []
        e = lambda t: o.append(I(t))
        t = TMP
        for rt in range(4):
            a = ACCA + rt*8
            e(f'v_pk_add_f32 {vr(t,2)}, {vr(a,2)}, {vr(a+2,2)}'); e(f'v_pk_mul_f32 {vr(t+2,2)}, {vr(a,2)}, {vr(a,2)}')
            e(f'v_pk_add_f32 {vr(t+4,2)}, {vr(a+4,2)}, {vr(a+6,2)}')
            for i in range(1, 4): e(f'v_pk_fma_f32 {vr(t+2,2)}, {vr(a+2*i,2)}, {vr(a+2*i,2)}, {vr(t+2,2)}')
            e(f'v_pk_add_f32 {vr(t,2)}, {vr(t,2)}, {vr(t+4,2)}')
            e(f'v_add_f32 v{t+12+rt}, v{t+2}, v{t+3}')
            e(f'v_add_f32 v{t+8+rt}, v{t}, v{t+1}')
        for b in (t+8, t+12):
            e(f'v_permlane16_swap_b32 v{b}, v{b+1}'); e(f'v_permlane16_swap_b32 v{b+2}, v{b+3}')
        for b in (t+8, t+12):
            e(f'v_add_f32 v{b}, v{b}, v{b+1}'); e(f'v_add_f32 v{b+2}, v{b+2}, v{b+3}')
        for b in (t+8, t+12): e(f'v_permlane32_swap_b32 v{b}, v{b+2}')
        e(f'v_add_f32 v{t}, v{t+8}, v{t+10}'); e(f'v_add_f32 v{t+1}, v{t+12}, v{t+14}')
        e(f's_lshl_b32 s68, {sW}, 3'); e(f's_add_u32 s68, s68, {STA}')
        e(f'v_lshl_add_u32 v{t+2}, v0, 5, s68')
        e(f'ds_write_b64 v{t+2}, {vr(t,2)}')
        e(f'v_and_b32 v{t+3}, 15, v0'); e(f'v_lshrrev_b32 v{t+4}, 4, v0')
        e(f's_lshl_b32 s68, {sW}, 9'); e(f's_add_u32 s68, s68, {STA}')
        e(f'v_lshl_add_u32 v{t+2}, v{t+3}, 5, s68'); e(f'v_lshl_add_u32 v{t+2}, v{t+4}, 3, v{t+2}')
        o.append(WaitLGKM0()); e('s_barrier')
        e(f'ds_read_b64 {vr(t+8,2)}, v{t+2}')
        e(f's_lshl_b32 s68, {sRB}, 3'); e(f's_add_u32 s68, s68, {sCB}'); e('s_lshl_b32 s68, s68, 10')
        e(f's_lshl_b32 s69, {sW}, 8'); e('s_add_u32 s68, s68, s69'); e(f's_add_u32 s68, s68, {WS_STATS}')
        e(f'v_lshlrev_b32 v{t+2}, 4, v{t+3}')
        e(f'v_mov_b32 v{t+10}, {sTAG}'); e(f'v_mov_b32 v{t+11}, {sTAG}')
        o += self.allred4([t+8, t+9], [t+4, t+5], 'v_add_f32')
        e(f'buffer_store_dwordx4 {vr(t+8)}, v{t+2}, {SWS}, s68 offen sc1')
        return o

    def checked_load(self, loads, cmps, name):
        lab, back = self.label(name), self.label(name + 'b')
        chk = [I(c) for c in cmps] + [I(f's_cbranch_vccnz {lab}'), I(f'{back}:')]
        s = [f'{lab}:', f's_mov_b32 {sCNT}, 0', f'{lab}_l:'] + loads + [f's_add_u32 {sCNT}, {sCNT}, 1', 's_waitcnt vmcnt(0)']
        for c in cmps: s += [c, 's_nop 1']
        s += [f's_cmp_gt_u32 {sCNT}, {SPIN}', f's_cbranch_scc1 {back}', f's_cbranch_vccnz {lab}_l', f's_branch {back}']
        self.slow += s
        return [I(l) for l in loads], chk

    def stats_recv_norm(self, d1, d2):
        o = []
        e = lambda t: o.append(I(t))
        t = TMP
        o.append(('delay', d1))
        e(f'v_and_b32 v{t+8}, 15, v0'); e(f'v_lshrrev_b32 v{t+9}, 4, v0')
        e(f'v_lshlrev_b32 v{t+10}, 4, v{t+8}'); e(f'v_lshl_add_u32 v{t+10}, v{t+9}, 10, v{t+10}')
        e(f's_lshl_b32 {sO1}, {sRB}, 13'); e(f's_lshl_b32 {sO2}, {sW}, 8'); e(f's_add_u32 {sO1}, {sO1}, {sO2}'); e(f's_add_u32 {sO1}, {sO1}, {WS_STATS}')
        e(f's_add_u32 {sO2}, {sO1}, 4096')
        iss, chk = self.checked_load([f'buffer_load_dwordx4 {vr(t)}, v{t+10}, {SWS}, {sO1} offen sc1',
                                      f'buffer_load_dwordx4 {vr(t+4)}, v{t+10}, {SWS}, {sO2} offen sc1'],
                                     [f'v_xor_b32 v{t+11}, {sTAG}, v{t+2}', f'v_xor_b32 v{t+12}, {sTAG}, v{t+7}',
                                      f'v_or_b32 v{t+11}, v{t+11}, v{t+12}', f'v_cmp_ne_u32 vcc, 0, v{t+11}'], 'st')
        o += iss
        e(f's_lshl_b32 {sO3}, {sW}, 6'); e(f's_add_u32 {sO3}, {sO3}, {RS + 64}')
        e(f'v_lshl_add_u32 v{t+13}, v{t+8}, 2, {sO3}')
        e(f'ds_read_b32 v{t+13}, v{t+13}')
        o.append(('delay', d2))
        o += chk
        e(f'v_add_f32 v{t}, v{t}, v{t+4}'); e(f'v_add_f32 v{t+1}, v{t+1}, v{t+5}')
        o += self.allred4([t, t+1], [t+2, t+3], 'v_add_f32')
        e(f'v_mul_f32 v{t+13}, v{t+13}, v{t+13}')
        e(f'v_mul_f32 v{t}, {hex(f2u(1.0/896))}, v{t}')
        e(f'v_rcp_f32 v{t+13}, v{t+13}')
        e(f'v_mul_f32 v{t+1}, {hex(f2u(1.0/896))}, v{t+1}')
        e(f'v_fma_f32 v{t+1}, -v{t}, v{t}, v{t+1}')
        e(f'v_max_f32 v{t+1}, 0, v{t+1}')
        e(f'v_fmac_f32 v{t+1}, {hex(f2u(1e-5))}, v{t+13}')
        e(f'v_rsq_f32 v{t+2}, v{t+1}')
        e(f's_lshl_b32 {sO3}, {sW}, 7'); e(f's_add_u32 {sO3}, {sO3}, {STB}')
        e(f'v_mul_f32 v{t+3}, -v{t}, v{t+2}')
        e(f'v_lshl_add_u32 v{t+4}, v{t+8}, 3, {sO3}')
        e(f'ds_write_b64 v{t+4}, {vr(t+2,2)}')
        e(f's_mov_b32 {sO3}, {STB}')
        e(f'v_lshl_add_u32 v{t+12}, v{t+8}, 3, {sO3}')
        o.append(WaitLGKM0()); e('s_barrier')
        for rt in range(4): e(f'ds_read_b64 {vr(t+2*rt,2)}, v{t+12} offset:{rt*128}')
        e(f'v_bfe_u32 v{t+10}, v0, 1, 2'); e(f'v_xor_b32 v{t+10}, v{t+10}, v{t+9}'); e(f'v_lshlrev_b32 v{t+10}, 4, v{t+10}')
        e(f'v_lshl_add_u32 v{t+10}, v{t+8}, 6, v{t+10}')
        e(f's_add_u32 {sO3}, {sM0B}, {PG_TR*PAGE}')
        e(f'v_add_u32 v{t+10}, {sO3}, v{t+10}')
        e(f'v_bfe_u32 v{t+11}, v0, 3, 1'); e(f'v_and_b32 v{t+12}, 3, v0'); e(f'v_xor_b32 v{t+11}, v{t+11}, v{t+12}'); e(f'v_lshlrev_b32 v{t+11}, 4, v{t+11}')
        e(f'v_bfe_u32 v{t+12}, v0, 2, 2'); e(f'v_lshl_add_u32 v{t+11}, v{t+12}, 6, v{t+11}'); e(f'v_lshl_add_u32 v{t+11}, v{t+9}, 9, v{t+11}')
        e(f'v_add_u32 v{t+11}, {sO3}, v{t+11}')
        e(f'v_xor_b32 v{t+12}, {32 + 256}, v{t+11}')
        e(f's_lshl_b32 {sO1}, {sCB}, 2'); e(f's_add_u32 {sO1}, {sO1}, {sW}'); e(f's_lshl_b32 {sO2}, {sO1}, 17'); e(f's_add_u32 {sZB}, {sO2}, {WS_Z2N}')
        e(f's_lshl_b32 {sO2}, {sRB}, 12'); e(f's_add_u32 {sO2}, {sO2}, {sZB}')
        e(f's_lshl_b32 {sO1}, {sO1}, 7'); e(f's_add_u32 {sO4}, {sO1}, {WS_FLAGZ}')
        e(f's_lshl_b32 {sO1}, {sRB}, 2'); e(f's_add_u32 {sO1}, {sO1}, {sO4}')
        tok = Tok()
        for ks in range(2):
            for rt in (2*ks, 2*ks+1):
                a = ACCA + rt*8
                for i in range(8): e(f'v_fma_f32 v{a+i}, v{a+i}, v{t+2*rt}, v{t+2*rt+1}')
                for i in range(4): e(f'v_cvt_pk_bf16_f32 v{a+i}, v{a+2*i}, v{a+2*i+1}')
                e(f'ds_write_b128 v{t+10}, {vr(a)} offset:{(rt&1)*1024}')
            for c in range(2):
                d = ACCA + ks*16 + c*8 + 4
                e(f'ds_read_b64_tr_b16 {vr(d,2)}, v{t+11} offset:{c*8}')
                e(f'ds_read_b64_tr_b16 {vr(d+2,2)}, v{t+12} offset:{c*8}')
        o.append(('delay', 4))
        for ks in range(2):
            for c in range(2):
                d = ACCA + ks*16 + c*8 + 4
                o.append(I(f'buffer_store_dwordx4 {vr(d)}, {vL16}, {SWS}, {sO2} offen offset:{(ks*2+c)*1024} sc1', tok if ks*2+c == 3 else None))
        e(f'v_mov_b32 v{t}, {sTAG}'); e(f'v_mov_b32 v{t+1}, 0')
        o.append(('delay', 60))
        o.append(WaitVM(tok))
        e(f'buffer_store_dword v{t}, v{t+1}, {SWS}, {sO1} offen sc1')
        return o

    def attention(self, T0):
        o = []
        e = lambda t: o.append(I(t))
        t = T0
        rv = t
        sel = t + 20
        ones = t + 24
        x = t + 28
        e(f'v_and_b32 v{x}, 15, v0'); e(f'v_lshrrev_b32 v{x+1}, 4, v0'); e(f'v_and_b32 v{x+2}, 1, v0')
        e(f'v_lshlrev_b32 v{x+3}, 4, v{x+1}'); e(f'v_add_u32 v{x+3}, {RS}, v{x+3}')
        for T in range(5): e(f'ds_read_b128 {vr(rv+4*T)}, v{x+3} offset:{T*64}')
        e(f'v_cmp_eq_u32 {mP}, 1, v{x+2}')
        e(f'v_lshl_add_u32 v{x+1}, v{x+1}, 2, v{x+2}')
        e(f'v_cmp_le_u32 {mA}, v{x+1}, v{x}')
        e(f'v_add_u32 v{x+1}, 2, v{x+1}')
        e(f'v_cmp_le_u32 {mB}, v{x+1}, v{x}')
        e(f'v_mov_b32 v{x}, 0x0c0c0100'); e(f'v_mov_b32 v{x+1}, 0x01000c0c'); e(f'v_mov_b32 v{x+2}, 0x0c0c0c0c')
        e(f'v_cndmask_b32 v{x}, v{x}, v{x+1}, {mP}')
        e(f'v_cndmask_b32 v{sel}, v{x}, v{x+2}, {mA}'); e(f'v_cndmask_b32 v{sel+2}, v{x+2}, v{x}, {mA}')
        e(f'v_mov_b32 v{x}, 0x0c0c0302'); e(f'v_mov_b32 v{x+1}, 0x03020c0c')
        e(f'v_cndmask_b32 v{x}, v{x}, v{x+1}, {mP}')
        e(f'v_cndmask_b32 v{sel+1}, v{x}, v{x+2}, {mB}'); e(f'v_cndmask_b32 v{sel+3}, v{x+2}, v{x}, {mB}')
        for i in range(4): e(f'v_mov_b32 v{ones+i}, {sONES}')
        for rt in range(4):
            e(f'v_mul_f32 v{x}, {hex(f2u(0.25*LOG2E))}, v{vR+1+rt}')
            for i in range(4): e(f'v_mul_f32 v{QA+4*rt+i}, v{x}, v{QA+4*rt+i}')
            for i in range(2): e(f'v_cvt_pk_bf16_f32 v{QA+2*rt+i}, v{QA+4*rt+2*i}, v{QA+4*rt+2*i+1}')
        for T in range(5):
            for i in range(4): e(f'v_mul_f32 v{KA+4*T+i}, v{vR+T}, v{KA+4*T+i}')
            for i in range(2): e(f'v_cvt_pk_bf16_f32 v{KA+2*T+i}, v{KA+4*T+2*i}, v{KA+4*T+2*i+1}')
        for T in range(5):
            for i in range(4): e(f'v_mul_f32 v{VA+4*T+i}, v{rv+4*T+i}, v{VA+4*T+i}')
            for i in range(2): e(f'v_cvt_pk_bf16_f32 v{VA+2*T+i}, v{VA+4*T+2*i}, v{VA+4*T+2*i+1}')
        for i in range(4): e(f'v_mov_b32 v{x+i}, {sBIAS}')
        SC = [(rv, rv+4), (rv+8, rv+12), (rv+16, QA+8), (QA+12, KA+12)]
        for rt in range(4):
            p, c = SC[rt]
            o.append(MF(p, vr(KA+2*rt, 2), vr(QA+2*rt, 2), vr(x) if rt == 0 else '0', k=16))
            o.append(MF(c, vr(KA+2*rt+2, 2), vr(QA+2*rt, 2), '0', k=16))
        o.append(('delay', 2))
        for rt in range(4):
            p, c = SC[rt]
            e(f'v_cndmask_b32 v{p}, v{p}, v{p+1}, {mP}'); e(f'v_cndmask_b32 v{p+2}, v{p+2}, v{p+3}, {mP}')
            e(f'v_cndmask_b32 v{c}, v{c}, v{c+1}, {mP}'); e(f'v_cndmask_b32 v{c+2}, v{c+2}, v{c+3}, {mP}')
            e(f'v_cndmask_b32 v{c}, v{p}, v{c}, {mA}'); e(f'v_cndmask_b32 v{c+1}, v{p+2}, v{c+2}, {mB}')
            e(f'v_max_f32 v{c+2}, v{c}, v{c+1}')
        o += self.allred4([SC[rt][1]+2 for rt in range(4)], [SC[rt][1]+3 for rt in range(4)], 'v_max_f32')
        for rt in range(4):
            p, c = SC[rt]
            e(f'v_sub_f32 v{c}, v{c}, v{c+2}'); e(f'v_sub_f32 v{c+1}, v{c+1}, v{c+2}')
        for rt in range(4):
            p, c = SC[rt]
            e(f'v_exp_f32 v{c}, v{c}'); e(f'v_exp_f32 v{c+1}, v{c+1}')
        for rt in range(4):
            p, c = SC[rt]
            e(f'v_cvt_pk_bf16_f32 v{c}, v{c}, v{c+1}')
            for i in range(4): e(f'v_perm_b32 v{p+i}, v{c}, v{c}, v{sel+i}')
        DEN = [QA, QA+4, KA, KA+4]
        for rt in range(4):
            p, c = SC[rt]
            o.append(MF(c, vr(VA+2*rt), vr(p), '0'))
            o.append(MF(DEN[rt], vr(ones), vr(p), '0'))
        e(f's_lshl_b32 s74, {sRB}, 5'); e(f's_lshl_b32 s75, {sCB}, 2'); e('s_add_u32 s74, s74, s75'); e(f's_add_u32 s74, s74, {sW}')
        e('s_lshl_b32 s75, s74, 2'); e(f's_add_u32 s75, s75, {WS_FLAGO}')
        e('s_lshl_b32 s74, s74, 11'); e(f's_add_u32 s74, s74, {WS_O}')
        e(f'v_lshlrev_b32 v{x}, 3, v0'); e(f'v_mov_b32 v{x+1}, {sTAG}'); e(f'v_mov_b32 v{x+2}, 0')
        for rt in range(4): e(f'v_rcp_f32 v{DEN[rt]}, v{DEN[rt]}')
        tok = Tok()
        for rt in range(4):
            p, c = SC[rt]
            for i in range(4): e(f'v_mul_f32 v{c+i}, v{c+i}, v{DEN[rt]}')
            for i in range(2): e(f'v_cvt_pk_bf16_f32 v{c+i}, v{c+2*i}, v{c+2*i+1}')
            o.append(I(f'buffer_store_dwordx2 {vr(c,2)}, v{x}, {SWS}, s74 offen offset:{rt*512} sc1', tok if rt == 3 else None))
        o.append(('delay', 60))
        o.append(WaitVM(tok))
        e(f'buffer_store_dword v{x+1}, v{x+2}, {SWS}, s75 offen sc1')
        return o

    def flush(self, bg):
        o = []
        while not bg.empty():
            x = bg.pop()
            if not isinstance(x, tuple): o.append(x)
        bg.delay = 0
        return o

    def poll(self, soff, name):
        t = TMP + 22
        o = [I(f'v_and_b32 v{t}, 31, v0'), I(f'v_lshlrev_b32 v{t}, 2, v{t}')]
        iss, chk = self.checked_load([f'buffer_load_dword v{t+1}, v{t}, {SWS}, {soff} offen sc1'], [f'v_cmp_ne_u32 vcc, {sTAG}, v{t+1}'], name)
        return o + iss, chk

    def p3(self, outp):
        o = []
        e = lambda t: o.append(I(t))
        t = TMP
        HB, XF, SF, ACC, TRB, WB = 64, 32, 48, 176, 12, 192
        o += self.sync([], list(self.pending_release)); self.pending_release = []
        o += self.issue_free()
        assert self.nxt == len(self.loads)
        e(f'v_lshrrev_b32 v{t}, 3, v0'); e(f'v_and_b32 v{t+1}, 7, v0'); e(f'v_xor_b32 v{t+1}, v{t+1}, v{t}')
        e(f's_lshl_b32 s68, {sRB}, 6'); e(f's_lshl_b32 s69, {sW}, 4'); e('s_add_u32 s68, s68, s69'); e('s_lshl_b32 s68, s68, 10')
        e(f's_lshl_b32 s69, {sCB}, 7'); e(f's_add_u32 {sO1}, s68, s69')
        e(f'v_lshlrev_b32 v{t+2}, 10, v{t}'); e(f'v_lshl_add_u32 v{t+2}, v{t+1}, 4, v{t+2}'); e(f'v_add_u32 v{t+3}, {8*1024-1024}, v{t+2}')
        e(f's_add_u32 m0, {sM0B}, {PG_TR*PAGE}')
        tx = Tok()
        e(f'buffer_load_dwordx4 v{t+2}, {SX}, {sO1} offen lds')
        o.append(I(f'buffer_load_dwordx4 v{t+3}, {SX}, {sO1} offen offset:1024 lds', tx))
        e(f'v_add_u32 v{t+3}, 1024, v{t+3}')
        e(f'v_and_b32 v{t+4}, 15, v0'); e(f'v_lshrrev_b32 v{t+5}, 5, v0'); e(f'v_and_b32 v{t+6}, 7, v0'); e(f'v_xor_b32 v{t+5}, v{t+5}, v{t+6}')
        e(f'v_lshlrev_b32 v{t+5}, 4, v{t+5}'); e(f'v_lshl_add_u32 v{t+5}, v{t+4}, 7, v{t+5}')
        e(f'v_bfe_u32 v{t+6}, v0, 4, 1'); e(f'v_lshl_add_u32 v{t+5}, v{t+6}, 3, v{t+5}')
        e(f's_add_u32 s68, {sM0B}, {PG_TR*PAGE}'); e(f'v_add_u32 v{t+4}, s68, v{t+5}')
        for c in range(1, 4): e(f'v_xor_b32 v{t+4+c}, {32*c}, v{t+4}')
        e(f'v_add_u32 v{t+8}, s68, {vL16}')
        e(f's_lshl_b32 s68, {sW}, 5'); e(f'v_xor_b32 v{t+9}, s68, v{vTRC}')
        for w in range(3):
            for u in range(4):
                e(f'v_xor_b32 v{TRB+w*4+u}, {32*u + w*0x10000}, v{t+9}')
        e(f's_lshl_b32 s68, {sRB}, 7'); e(f's_add_u32 {sO2}, s68, {WS_FLAGH}')
        e(f's_lshl_b32 s68, {sRB}, 2'); e(f's_add_u32 s68, s68, {sW}'); e(f's_mul_i32 s68, s68, {28*1024}'); e(f's_add_u32 {sO3}, s68, {WS_H}')
        e(f's_lshl_b32 s68, {sRB}, 3'); e(f's_add_u32 s68, s68, {sCB}'); e('s_lshl_b32 s68, s68, 2'); e(f's_add_u32 s68, s68, {sW}')
        e('s_lshl_b32 s68, s68, 11'); e(f's_add_u32 {sO4}, s68, {WS_S}')
        o.append(WaitVM(tx))
        for c in range(4): e(f'ds_read_b64 {vr(XF+4*c+2,2)}, v{t+4+c}')
        o += self.sync(outp, [])
        for c in range(4):
            b = XF + 4*c
            e(f'v_lshlrev_b32 v{b}, 16, v{b+2}'); e(f'v_and_b32 v{b+1}, 0xffff0000, v{b+2}')
            e(f'v_lshlrev_b32 v{b+2}, 16, v{b+3}'); e(f'v_and_b32 v{b+3}, 0xffff0000, v{b+3}')
        def wf(ks, u):
            if ks < 16: return ar((ks*4+u)*4)
            return vr(WB + ((ks & 1)*4 + u)*4)
        def rd_w(ks):
            r = []
            for u in range(4):
                for h in range(2):
                    v, off = self.win(TRB, 4, u, outp[ks >> 1]['page']*PAGE + (ks & 1)*4096 + h*2048)
                    d = (ar((ks*4+u)*4 + 2*h, 2) if ks < 16 else vr(WB + ((ks & 1)*4+u)*4 + 2*h, 2))
                    r.append(I(f'ds_read_b64_tr_b16 {d}, {v} offset:{off}'))
            return r
        iss, chk = self.poll(sO2, 'h')
        for ks in range(8): o += rd_w(ks)
        o += iss
        for ks in range(8, 17): o += rd_w(ks)
        o += chk
        o += self.stamp(10)
        for ks in range(28):
            if ks % 4 == 0 and ks: e(f's_add_u32 {sO3}, {sO3}, 4096')
            e(f'buffer_load_dwordx4 {vr(HB+4*ks)}, {vL16}, {SWS}, {sO3} offen offset:{(ks%4)*1024} sc1')
        for hf in range(2): e(f'buffer_load_dwordx4 {vr(SF+8*hf+4)}, {vL16}, {SWS}, {sO4} offen offset:{hf*1024} sc1')
        for ks in range(28):
            mf = [MF(ACC+4*u, wf(ks, u), vr(HB+4*ks), '0' if ks == 0 else None) for u in range(4)]
            o += weave(mf, rd_w(ks+1) if 16 <= ks < 27 else [])
        o += self.stamp(11)
        for hf in range(2):
            b = SF + 8*hf
            for i in range(4):
                e(f'v_lshlrev_b32 v{b+2*i}, 16, v{b+4+i}') if i < 3 else e(f'v_lshlrev_b32 v{b+6}, 16, v{b+7}')
                e(f'v_and_b32 v{b+2*i+1}, 0xffff0000, v{b+4+i}')
        u = HB
        e(f's_mov_b32 s68, {hex(f2u(-LOG2E))}'); e(f's_mov_b32 s69, {hex(f2u(-LOG2E))}')
        for i in range(8): e(f'v_pk_mul_f32 {vr(u+2*i,2)}, {vr(ACC+2*i,2)}, s[68:69]')
        for i in range(16): e(f'v_exp_f32 v{u+i}, v{u+i}')
        for i in range(8): e(f'v_pk_add_f32 {vr(u+2*i,2)}, {vr(u+2*i,2)}, 1.0 op_sel_hi:[1,0]')
        for i in range(8): e(f'v_pk_mul_f32 {vr(ACC+2*i,2)}, {vr(ACC+2*i,2)}, {vr(SF+2*i,2)}')
        for i in range(16): e(f'v_rcp_f32 v{u+i}, v{u+i}')
        for i in range(8): e(f'v_pk_fma_f32 {vr(ACC+2*i,2)}, {vr(ACC+2*i,2)}, {vr(u+2*i,2)}, {vr(XF+2*i,2)}')
        for c in range(4):
            for i in range(2): e(f'v_cvt_pk_bf16_f32 v{u+2*c+i}, v{ACC+4*c+2*i}, v{ACC+4*c+2*i+1}')
            e(f'ds_write_b64 v{t+4+c}, {vr(u+2*c,2)}')
        for hf in range(2): e(f'ds_read_b128 {vr(u+8+4*hf)}, v{t+8} offset:{hf*1024}')
        for hf in range(2): e(f'buffer_store_dwordx4 {vr(u+8+4*hf)}, v{t+2+hf}, {SOUT}, {sO1} offen')
        o += self.stamp(12)
        return o

    def ln_all(self, role):
        o = []
        t = TMP
        o += self.addr_setup(role)
        o += self.issue_free()
        o += self.addr_setup2(role)
        if role == 'Z':
            o.append(I(f'v_and_b32 v{t+16}, 15, v0')); o.append(I(f'v_lshlrev_b32 v{t+16}, 1, v{t+16}'))
            o.append(I(f's_lshl_b32 s68, {sRB}, 7'))
            for rt in range(4): o.append(I(f'buffer_load_ushort v{vB+rt}, v{t+16}, {SBSP}, s68 offen offset:{rt*32}'))
        o.append(WaitLGKM0())
        o.append(I(f's_add_u32 {sTAG}, {sTAG}, {hex(TAGC)}'))
        if self.prof:
            o += [I(f's_lshl_b32 {sPB}, s2, 2'), I(f's_add_u32 {sPB}, {sPB}, {sW}'), I(f's_lshl_b32 {sPB}, {sPB}, 7'), I(f's_add_u32 {sPB}, {sPB}, {WS_PROF}')]
        o += self.stamp(0)
        o += self.ln_group(64, 32, t+5, PAGE, t+8, 3)
        o += self.stamp(1)
        o += self.ln_group(96, 32, t+6, PAGE, t+9, 3)
        o += self.ln_group(128, 16, t+7, 4096, t+10, 4)
        o += self.stamp(2)
        return o

    def rd_r(self):
        t = TMP
        o = [I(f'v_and_b32 v{t}, 15, v0'), I(f'v_lshlrev_b32 v{t}, 2, v{t}'), I(f'v_add_u32 v{t}, {RS}, v{t}')]
        o += [I(f'ds_read_b32 v{vR+T}, v{t} offset:{T*64}') for T in range(5)]
        return o

    def role_z(self):
        o = []
        e = lambda t: o.append(I(t))
        pa = [[self.pg_win(n, k, True) for k in range(2)] for n in range(8)]
        pc = [[self.pg_qkv(n, t) for t in range(3)] for n in range(8)]
        pb = [[self.pg_win(n, k, False) for k in range(2)] for n in range(8)]
        ps = [self.pg_sp(n) for n in range(32)]
        po = [self.pg_out(n) for n in range(14)]
        flat = lambda L: [x for y in L for x in y]
        self.ring_init(flat(pa) + flat(pc) + flat(pb) + ps + po, range(10, NRING))
        o += self.ln_all('Z')
        sa = [dict(pages=pa[n], rel=[n] + ([8, 9] if n == 7 else []), buf=n & 1,
                   reads=lambda b, n=n: self.rd_z(pa[n], b) + self.rd_xn(n), mf=lambda b, n=n: self.mf_z(n, b, ACCA, n == 0)) for n in range(8)]
        sc = [dict(pages=pc[n], buf=n & 1, reads=lambda b, n=n: self.rd_c(pc[n], b), mf=lambda b, n=n: self.mf_c(n, b, n == 0)) for n in range(8)]
        sb = [dict(pages=pb[n], buf=n & 1, reads=lambda b, n=n: self.rd_z(pb[n], b), mf=lambda b, n=n: self.mf_z(n, b, ACCB, n == 0)) for n in range(8)]
        look = lambda s: dict(s, mf=None)
        o += self.sync(pa[0], [])
        o += sa[0]['reads'](0) + self.rd_r()
        o += self.run_stages(sa + [look(sc[0])])
        o += self.stamp(3)
        o += self.gelu(ACCA)
        o += self.stats_publish()
        o += self.stamp(4)
        bg1, bg2 = BG(), BG()
        bg1.add(self.stats_recv_norm(130, 30))
        o += self.run_stages(sc + [look(sb[0])], [bg1])
        o += self.stamp(5)
        bg2.add([('delay', 1)] + self.attention(200))
        o += self.run_stages(sb, [bg1, bg2])
        o += self.flush(bg1) + self.flush(bg2)
        o += self.stamp(6)
        SPB, G = 64, 32
        vSP = 12
        t = TMP
        iss, chk = self.poll(sO4, 'z')
        o += iss
        e(f'v_and_b32 v{t+16}, 15, v0'); e(f'v_lshrrev_b32 v{t+17}, 4, v0'); e(f'v_lshrrev_b32 v{t+18}, 1, v{t+16}')
        e(f'v_xor_b32 v{t+17}, v{t+17}, v{t+18}'); e(f'v_lshlrev_b32 v{t+17}, 4, v{t+17}'); e(f'v_lshl_add_u32 v{vSP}, v{t+16}, 7, v{t+17}')
        e(f'v_xor_b32 v{vSP+1}, 64, v{vSP}')
        for w in (1, 2):
            for k in range(2): e(f'v_add_u32 v{vSP+2*w+k}, {w*0x10000}, v{vSP+k}')
        e(f's_lshl_b32 {sZP}, {sROT2}, 12')
        def rd_sp(n):
            r = []
            for ks2 in range(2):
                for rt in range(4):
                    v, off = self.win(vSP, 2, ks2, ps[n]['page']*PAGE + rt*2048)
                    r.append(I(f'ds_read_b128 {vr(SPB + (n&1)*32 + (ks2*4+rt)*4)}, {v} offset:{off}'))
            return r
        ZD = 12
        def ld_z(n):
            r = [I(f's_add_u32 s68, {sZP}, {sZB}')]
            for f in range(4): r.append(I(f'buffer_load_dwordx4 {ar(((n & 15)*4 + f)*4)}, {vL16}, {SWS}, s68 offen offset:{f*1024} sc1'))
            r += [I(f's_add_u32 {sZP}, {sZP}, 4096'), I(f's_and_b32 {sZP}, {sZP}, {0x1ffff}')]
            return r
        def mf_p2(n):
            r = []
            for ks2 in range(2):
                for c in range(2):
                    for rt in range(4):
                        r.append(MF(G + (rt*2+c)*4, ar(((n & 15)*4 + ks2*2 + c)*4), vr(SPB + (n&1)*32 + (ks2*4+rt)*4), '0' if n == 0 and ks2 == 0 else None))
            return r
        GRP = 4
        o += self.sync(ps[0:GRP+1], [])
        o += rd_sp(0)
        o += chk
        o += self.stamp(7)
        for n in range(ZD): o += ld_z(n)
        bg3 = BG(); bg3.add(self.gelu(ACCB, npk=False))
        done = []
        for n in range(32):
            high = []
            if n % GRP == 0 and n:
                o += self.sync(ps[n+1:n+GRP+1], done); done = []
            if n + 1 < 32: high += rd_sp(n+1)
            done.append(ps[n])
            if n + ZD < 32: high += ld_z(n + ZD)
            high += self.issue_free(maxn=1 if n + ZD < 32 else 2)
            o += weave(mf_p2(n), high, [bg3])
        self.pending_release = done
        o += self.flush(bg3)
        o += self.stamp(8)
        for rt in range(4):
            e(f'v_lshlrev_b32 v{t+2*rt+1}, 16, v{vB+rt}'); e(f'v_mov_b32 v{t+2*rt}, v{vR+1+rt}')
            e(f'v_mul_f32 v{t+2*rt+1}, v{t+2*rt+1}, v{vR+1+rt}')
        e(f's_lshl_b32 s68, {sCB}, 2'); e(f's_add_u32 s68, s68, {sW}')
        e(f's_mul_i32 s69, {sRB}, {4*28}'); e('s_add_u32 s69, s69, s68'); e('s_lshl_b32 s69, s69, 10'); e(f's_add_u32 s69, s69, {WS_H}')
        e(f's_lshl_b32 s70, {sRB}, 5'); e('s_add_u32 s70, s70, s68'); e('s_lshl_b32 s70, s70, 2'); e(f's_add_u32 s70, s70, {WS_FLAGH}')
        tok = Tok()
        for rt in range(4):
            c = vr(t + 2*rt, 2)
            g, z = G + rt*8, ACCB + rt*8
            for i in range(4): e(f'v_pk_fma_f32 {vr(g+2*i,2)}, {vr(g+2*i,2)}, {c}, {c} op_sel:[0,0,1] op_sel_hi:[1,0,1]')
            for i in range(4): e(f'v_pk_mul_f32 {vr(g+2*i,2)}, {vr(g+2*i,2)}, {vr(z+2*i,2)}')
            for i in range(4): e(f'v_cvt_pk_bf16_f32 v{g+i}, v{g+2*i}, v{g+2*i+1}')
            o.append(I(f'buffer_store_dwordx4 {vr(g)}, {vL16}, {SWS}, s69 offen sc1', tok if rt == 3 else None))
            e(f's_add_u32 s69, s69, {28*1024}')
        e(f'v_mov_b32 v{t+8}, {sTAG}'); e(f'v_mov_b32 v{t+9}, 0')
        o.append(WaitVM(tok))
        e(f'buffer_store_dword v{t+8}, v{t+9}, {SWS}, s70 offen sc1')
        o += self.stamp(9)
        o += self.p3(po)
        e('s_cmp_lg_u32 s2, 0'); e('s_cbranch_scc1 L_end')
        e(f'v_mov_b32 v{t+8}, {sTAG}'); e(f'v_mov_b32 v{t+9}, 0')
        e(f'buffer_store_dword v{t+8}, v{t+9}, {SWS}, 0 offen')
        e('s_endpgm')
        return o

    def role_s(self):
        o = []
        e = lambda t: o.append(I(t))
        t = TMP
        pc = [[self.pg_qkv(n, tt) for tt in range(3)] for n in range(8)]
        pw = [[[self.pg_wo(p, n, k) for k in range(2)] for n in range(8)] for p in range(4)]
        po = [self.pg_out(n) for n in range(14)]
        flat = lambda L: [x for y in L for x in y]
        self.ring_init(flat(pc) + flat(flat(pw)) + po, range(10, NRING))
        o += self.ln_all('S')
        e(f's_lshl_b32 s68, {sRB}, 13'); e(f's_add_u32 s68, s68, {WS_STATS + 7*1024}')
        e(f'v_mov_b32 v{t+12}, 0'); e(f'v_mov_b32 v{t+13}, 0'); e(f'v_mov_b32 v{t+14}, {sTAG}'); e(f'v_mov_b32 v{t+15}, {sTAG}')
        e(f'buffer_store_dwordx4 {vr(t+12)}, {vL16}, {SWS}, s68 offen sc1')
        sc = [dict(pages=pc[n], rel=([8, 9] if n == 7 else []), buf=n & 1,
                   reads=lambda b, n=n: self.rd_c(pc[n], b) + self.rd_xn(n), mf=lambda b, n=n: self.mf_c(n, b, n == 0)) for n in range(8)]
        o += self.sync(pc[0], [])
        o += sc[0]['reads'](0) + self.rd_r()
        o += self.run_stages(sc)
        o += self.stamp(5)
        bg = BG(); bg.add(self.attention(200))
        o += self.flush(bg)
        o += self.stamp(6)
        e(f's_lshl_b32 s68, {sRB}, 7'); e(f's_add_u32 {sO1}, s68, {WS_FLAGO}')
        iss, chk = self.poll(sO1, 'o')
        o += iss + chk
        o += self.stamp(7)
        e(f's_lshl_b32 s68, {sRB}, 16'); e(f's_add_u32 s68, s68, {sM0B}'); e(f's_add_u32 s68, s68, {WS_O}')
        otok = []
        for p in range(8):
            e(f's_lshr_b32 s69, {sKIN[p]}, 3'); e(f's_add_u32 s69, s69, s68')
            e(f's_add_u32 m0, {sM0B}, {p*PAGE}')
            e(f'buffer_load_dwordx4 {vL16}, {SWS}, s69 offen sc1 lds')
            tk = Tok(); otok.append(dict(tok=tk, page=p))
            o.append(I(f'buffer_load_dwordx4 {vL16}, {SWS}, s69 offen offset:1024 sc1 lds', tk))
        e(f'v_lshlrev_b32 v{vXR[0]}, 3, v0')
        def rd_o(n):
            r = []
            for ks2 in range(2):
                for rt in range(4):
                    for hh in range(2):
                        r.append(I(f'ds_read_b64 {ar(self.xa(n, ks2, rt) + 2*hh, 2)}, v{vXR[0]} offset:{n*PAGE + (ks2*2+hh)*2048 + rt*512}'))
            return r
        stages = []
        accs = [32, 64, 32, 64]
        e(f's_lshl_b32 s68, {sRB}, 16'); e(f's_lshr_b32 s69, {sW}, 1'); e('s_lshl_b32 s69, s69, 13'); e('s_add_u32 s68, s68, s69')
        e(f's_and_b32 s69, {sW}, 1'); e('s_lshl_b32 s69, s69, 10'); e('s_add_u32 s68, s68, s69'); e(f's_add_u32 {sO2}, s68, {WS_S}')
        bg = BG()
        stok = Tok()
        def epi(p):
            r = [('delay', 1)]
            for rt in range(4):
                a = accs[p] + rt*8
                for i in range(4): r.append(I(f'v_cvt_pk_bf16_f32 v{a+i}, v{a+2*i}, v{a+2*i+1}'))
                r.append(I(f's_add_u32 {sO3}, {sO2}, {p*16384 + rt*2048}'))
                r.append(I(f'buffer_store_dwordx4 {vr(a)}, {vL16}, {SWS}, {sO3} offen sc1', stok if (p, rt) == (3, 3) else None))
            return r
        allst = []
        for p in range(4):
            for n in range(8):
                allst.append(dict(pages=pw[p][n] + ([otok[n]] if p == 0 else []), buf=n & 1,
                                  reads=lambda b, p=p, n=n: self.rd_z(pw[p][n], b) + (rd_o(n) if p == 0 else []),
                                  mf=lambda b, p=p, n=n: self.mf_z(n, b, accs[p], n == 0)))
        o += self.sync(allst[0]['pages'], [])
        o += allst[0]['reads'](0)
        look = lambda s: dict(s, mf=None)
        for p in range(4):
            seg = allst[p*8:p*8+8] + ([look(allst[p*8+8])] if p < 3 else [])
            o += self.run_stages(seg, [bg])
            o += self.flush(bg)
            bg.add(epi(p))
        o += self.flush(bg)
        o += self.stamp(8)
        e(f's_lshl_b32 s70, {sRB}, 5'); e(f's_add_u32 s70, s70, {sW}'); e('s_lshl_b32 s70, s70, 2'); e(f's_add_u32 s70, s70, {WS_FLAGH + 28*4}')
        e(f'v_mov_b32 v{t+8}, {sTAG}'); e(f'v_mov_b32 v{t+9}, 0')
        o.append(WaitVM(stok))
        e(f'buffer_store_dword v{t+8}, v{t+9}, {SWS}, s70 offen sc1')
        o += self.stamp(9)
        self.pending_release = []
        o += self.p3(po)
        e('s_endpgm')
        return o

    def build(self):
        pro = self.prologue() + self.x_loads()
        br = [I(f's_cmp_eq_u32 {sCB}, 7'), I('s_cbranch_scc1 L_roleS')]
        z = self.role_z()
        s = self.role_s()
        st1, st2 = {}, {}
        if 'nomfma' in OPT:
            z = [i for i in z if i.cls != 'mfma']; s = [i for i in s if i.cls != 'mfma']
        if 'nodsr' in OPT:
            z = [i for i in z if i.cls != 'dsr']; s = [i for i in s if i.cls != 'dsr']
        if 'nodma' in OPT:
            for i in z + s:
                if i.cls == 'dma' and i.tok is not None: i.tok.issued = True
            z = [i for i in z if i.cls != 'dma']; s = [i for i in s if i.cls != 'dma']
        if 'nont' in OPT:
            for i in z + s + pro: i.text = i.text.replace(' nt', '')
        tz = finalize(pro + br + z, st1)
        ts_all = finalize(pro + br + [I('L_roleS:')] + s, st2)
        ts = ts_all[ts_all.index('L_roleS:'):]
        print('role Z', st1, 'role S', st2, file=sys.stderr)
        hdr = open('cdna_kernels/' + NAME + '.s.ref').read().split('; Override launch')[0]
        L = [hdr.rstrip(), '; @launch grid=(256,1,1) block=(256,1,1) lds=163840',
             '.amdgcn_target "amdgcn-amd-amdhsa--gfx950"', '.text', f'.globl {NAME}_kernel', '.p2align 8',
             f'.type {NAME}_kernel,@function', f'{NAME}_kernel:']
        L += tz + ts + self.slow + ['L_end:', 's_endpgm']
        L += [f'.fill (65536 + 256 - (. - {NAME}_kernel)) / 4, 4, 0xBF810000']
        L += ['.section .rodata,"a"', '.p2align 6', f'.amdhsa_kernel {NAME}_kernel', '  .amdhsa_next_free_vgpr 512',
              '  .amdhsa_next_free_sgpr 102', '  .amdhsa_accum_offset 256', '  .amdhsa_group_segment_fixed_size 0',
              '  .amdhsa_kernarg_size 88', '  .amdhsa_user_sgpr_count 2', '  .amdhsa_user_sgpr_kernarg_segment_ptr 1',
              '  .amdhsa_system_sgpr_workgroup_id_x 1', '.end_amdhsa_kernel']
        return '\n'.join(L) + '\n'

if __name__ == '__main__':
    prof = '--prof' in sys.argv
    out = [a for a in sys.argv[1:] if not a.startswith('--')]
    src = Gen(prof).build()
    open(out[0] if out else f'cdna_kernels/{NAME}.s', 'w').write(src)
```
